```python
import torch

def _softmax(x, axis=-1):
    return torch.softmax(x, dim=axis)
def _gelu(x):
    return torch.nn.functional.gelu(x, approximate="tanh")
def _silu(x):
    return torch.nn.functional.silu(x)
def _sigmoid(x):
    return torch.sigmoid(x)
def _layernorm(x, axis=-1, eps=1e-5):
    m = x.mean(dim=axis, keepdim=True)
    v = x.var(dim=axis, keepdim=True, unbiased=False)
    return (x - m) / torch.sqrt(v + eps)
def _scatter_add(tgt, idx, src, axis=0):
    return tgt.clone().index_add_(axis, idx, src)
def _segment_sum(src, seg, n):
    out = torch.zeros((n,) + src.shape[1:], dtype=src.dtype)
    return out.index_add_(0, seg, src)
def _pad(x, pw):
    flat = tuple(v for pair in reversed(pw) for v in pair)
    return torch.nn.functional.pad(x, flat)

kernel_name = 'recurrent_scan__ssm_conv_s4d__dense_activation_silu__prompt'

def setup_inputs():

    _w = (lambda a: (lambda t: t.to(torch.bfloat16) if t.is_floating_point() else t)(torch.as_tensor(a)))
    def _A_setup():
        Bsz, L, D, N = 1, 2048, 576, 128
        return {
            "u": _w((lambda *s: torch.randn(*s, dtype=torch.bfloat16) * 0.05)(Bsz, L, D)),
            "log_A_real": _w((lambda *s: torch.randn(*s, dtype=torch.bfloat16) * 6.4)(D, N) * 0.5),
            "A_imag": _w((lambda *s: torch.randn(*s, dtype=torch.bfloat16) * 0.2)(D, N) * 3.14),
            "C_real": _w((lambda *s: torch.randn(*s, dtype=torch.bfloat16) * 0.4)(D, N) / N ** 0.5),
            "C_imag": _w((lambda *s: torch.randn(*s, dtype=torch.bfloat16) * 0.4)(D, N) / N ** 0.5),
            "log_dt": _w((lambda *s: torch.randn(*s, dtype=torch.bfloat16) * 0.2)(D) * 0.5 - 4.0),
            "D_skip": _w((lambda *s: torch.randn(*s, dtype=torch.bfloat16) * 0.2)(D)),
        }
    _A_in = _A_setup()

    def _B_setup():
        B, S, D, F = 1, 2048, 576, 4608
        return {
            "x": _w((lambda *s: torch.randn(*s, dtype=torch.bfloat16) * 0.05)(B, S, D)),
            "w1": _w((lambda *s: torch.randn(*s, dtype=torch.bfloat16) * 0.8)(D, F) * (D ** -0.5)),
            "w2": _w((lambda *s: torch.randn(*s, dtype=torch.bfloat16) * 0.1)(F, D) * (F ** -0.5)),
        }
    _B_in = _B_setup()

    return {
        "A_u": _A_in["u"],
        "A_log_A_real": _A_in["log_A_real"],
        "A_A_imag": _A_in["A_imag"],
        "A_C_real": _A_in["C_real"],
        "A_C_imag": _A_in["C_imag"],
        "A_log_dt": _A_in["log_dt"],
        "A_D_skip": _A_in["D_skip"],
        "B_x": _B_in["x"],
        "B_w1": _B_in["w1"],
        "B_w2": _B_in["w2"],
    }

def reference(A_u, A_log_A_real, A_A_imag, A_C_real, A_C_imag, A_log_dt, A_D_skip, B_x, B_w1, B_w2):
    def _A_ref(u, log_A_real, A_imag, C_real, C_imag, log_dt, D_skip):
        L = u.shape[1]
        dt = torch.exp(log_dt)
        A = -torch.exp(log_A_real) + 1j * A_imag
        C = (C_real + 1j * C_imag) * dt[:, None]
        pos = (lambda x, dt: x.to(dt))(torch.arange(L), log_dt.dtype)
        P = torch.exp((A * dt[:, None])[:, :, None] * pos[None, None, :])
        K = 2.0 * torch.einsum("dn,dnl->dl", C, P).real
        L2 = 2 * L
        u_t = (lambda x, *d: x.permute(*d))(u, 0, 2, 1)
        Kf = (lambda x, *a, **k: torch.fft.rfft(x.float(), *a, **k))(K, L2)
        Uf = (lambda x, *a, **k: torch.fft.rfft(x.float(), *a, **k))(u_t, L2)
        y = (lambda x, *a, **k: torch.fft.irfft(x, *a, **k).to(torch.bfloat16))(Uf * Kf[None, :, :], L2)[:, :, :L]
        y = (lambda x, *d: x.permute(*d))(y, 0, 2, 1)
        return y + u * D_skip[None, None, :]

    def _B_ref(x, w1, w2):
        h = torch.einsum("bsd,df->bsf", x, w1)
        h = _silu(h)
        out = torch.einsum("bsf,fd->bsd", h, w2)
        return out

    x = A_u
    xn = _layernorm(x, axis=-1)
    s = _A_ref(xn, A_log_A_real, A_A_imag, A_C_real, A_C_imag, A_log_dt, A_D_skip)
    g = _silu(_B_ref(xn, B_w1, B_w2))
    return x + s * g
```

```python
class Asm:
    def __init__(self):
        self.lines = []
        self.vm = 0
        self.nlabel = 0

    def e(self, s):
        self.lines.append("    " + s)

    def c(self, s):
        self.lines.append("    ; " + s)

    def label(self, name):
        self.lines.append(name + ":")

    def vmem(self, s, counted=True):
        self.e(s)
        if not counted:
            return None
        self.vm += 1
        return self.vm - 1

    def vm_n(self, seq):
        n = self.vm - seq - 1
        assert n >= 0
        return min(n, 63)

    def wait(self, vm=None, lgkm=None):
        parts = []
        if vm is not None:
            parts.append(f"vmcnt({vm})")
        if lgkm is not None:
            parts.append(f"lgkmcnt({lgkm})")
        self.e("s_waitcnt " + " ".join(parts))

    def text(self):
        return "\n".join(self.lines)


def vr(a, n=1):
    return f"v{a}" if n == 1 else f"v[{a}:{a+n-1}]"


def ar(a, n=1):
    return f"a{a}" if n == 1 else f"a[{a}:{a+n-1}]"


def sr(a, n=1):
    return f"s{a}" if n == 1 else f"s[{a}:{a+n-1}]"


def kernel_desc(name, vgpr, accum, sgpr=102):
    return f""".section .rodata,"a"
.p2align 6
.amdhsa_kernel {name}
  .amdhsa_next_free_vgpr {vgpr}
  .amdhsa_next_free_sgpr {sgpr}
  .amdhsa_accum_offset {accum}
  .amdhsa_group_segment_fixed_size 0
  .amdhsa_kernarg_size 104
  .amdhsa_user_sgpr_count 2
  .amdhsa_user_sgpr_kernarg_segment_ptr 1
  .amdhsa_system_sgpr_workgroup_id_x 1
  .amdhsa_float_denorm_mode_32 3
.end_amdhsa_kernel
.text
"""


def kernel_head(name):
    return f""".globl {name}
.p2align 8
.type {name},@function
{name}:
"""
```

```python
from asmgen import *
from k1 import WS_STATS, WS_YT, WS_PART, WS_SIZE


def unpack2(e, lo, hi, src):
    e(f"v_lshlrev_b32 v{lo}, 16, v{src}")
    e(f"v_and_b32 v{hi}, 0xffff0000, v{src}")


def round_pair(e, a0, a1, tmp):
    e(f"v_cvt_pk_bf16_f32 v{tmp}, v{a0}, v{a1}")
    unpack2(e, a0, a1, tmp)


def final_math(e, P, X, Y, D, M, RS, s_nl2e, T, OUT):
    O, G, XF, S = T, T + 8, T + 16, T + 24
    t0, t1 = T + 32, T + 33
    for k in range(4):
        unpack2(e, O + 2 * k, O + 2 * k + 1, P + k)
    for j in range(1, 8):
        for k in range(4):
            unpack2(e, G + 2 * k, G + 2 * k + 1, P + 4 * j + k)
        for k in range(4):
            e(f"v_pk_add_f32 {vr(O+2*k,2)}, {vr(O+2*k,2)}, {vr(G+2*k,2)}")
    for k in range(4):
        round_pair(e, O + 2 * k, O + 2 * k + 1, t0)
    for k in range(8):
        e(f"v_mul_f32 v{G+k}, s{s_nl2e}, v{O+k}")
    for k in range(8):
        e(f"v_exp_f32 v{G+k}, v{G+k}")
    for k in range(8):
        e(f"v_add_f32 v{G+k}, 1.0, v{G+k}")
    for k in range(8):
        e(f"v_rcp_f32 v{G+k}, v{G+k}")
    e("s_nop 0")
    for k in range(8):
        e(f"v_mul_f32 v{G+k}, v{G+k}, v{O+k}")
    for k in range(4):
        round_pair(e, G + 2 * k, G + 2 * k + 1, t0)
    for k in range(4):
        unpack2(e, XF + 2 * k, XF + 2 * k + 1, X + k)
    for k in range(8):
        e(f"v_sub_f32 v{S+k}, v{XF+k}, v{M}")
    for k in range(8):
        e(f"v_mul_f32 v{S+k}, v{S+k}, v{RS}")
    for k in range(4):
        round_pair(e, S + 2 * k, S + 2 * k + 1, t0)
    for k in range(4):
        unpack2(e, O + 2 * k, O + 2 * k + 1, D + k)
    for k in range(8):
        e(f"v_mul_f32 v{S+k}, v{S+k}, v{O+k}")
    for k in range(4):
        round_pair(e, S + 2 * k, S + 2 * k + 1, t0)
    for k in range(8):
        e(f"v_lshlrev_b32 v{O+k}, 16, v{Y+k}")
    for k in range(8):
        e(f"v_add_f32 v{S+k}, v{S+k}, v{O+k}")
    for k in range(4):
        round_pair(e, S + 2 * k, S + 2 * k + 1, t0)
    for k in range(8):
        e(f"v_mul_f32 v{S+k}, v{S+k}, v{G+k}")
    for k in range(4):
        round_pair(e, S + 2 * k, S + 2 * k + 1, t0)
    for k in range(8):
        e(f"v_add_f32 v{S+k}, v{S+k}, v{XF+k}")
    for k in range(4):
        e(f"v_cvt_pk_bf16_f32 v{OUT+k}, v{S+2*k}, v{S+2*k+1}")


def gen_k3(name):
    a = Asm()
    e = a.e
    e("s_cmp_ge_u32 s2, 576")
    e("s_cbranch_scc1 K3_END")
    e("s_load_dwordx2 s[44:45], s[0:1], 0")
    e("s_load_dwordx2 s[46:47], s[0:1], 48")
    e("s_load_dwordx2 s[48:49], s[0:1], 80")
    e("s_load_dwordx2 s[50:51], s[0:1], 96")
    e("v_and_b32 v1, 63, v0")
    e("v_lshrrev_b32 v2, 6, v0")
    e("s_lshl_b32 s20, s2, 2")
    e("v_and_b32 v3, 15, v1")
    e("v_readfirstlane_b32 s21, v2")
    e("v_lshrrev_b32 v4, 4, v1")
    e("s_nop 2")
    e("s_add_u32 s20, s20, s21")
    e("s_mul_hi_u32 s22, s20, 59652324")
    e("s_mul_i32 s23, s22, 72")
    e("s_sub_u32 s23, s20, s23")
    e("s_lshr_b32 s24, s23, 2")
    e("s_and_b32 s25, s23, 3")
    e("s_lshl_b32 s26, s22, 6")
    e("s_lshl_b32 s27, s25, 4")
    e("s_add_u32 s26, s26, s27")
    e("s_lshl_b32 s27, s24, 5")
    e("v_add_u32 v5, s26, v3")
    e("v_lshl_add_u32 v6, v4, 2, s27")
    e("s_waitcnt lgkmcnt(0)")
    for S, lo, size in ((4, 44, 2359296), (8, 46, 1152), (12, 48, 2359296), (16, 50, WS_SIZE)):
        e(f"s_mov_b32 s{S}, s{lo}")
        e(f"s_mov_b32 s{S+1}, s{lo+1}")
        e(f"s_mov_b32 s{S+2}, {size}")
        e(f"s_mov_b32 s{S+3}, 0x20000")
    P, X, Y, D, ST = 16, 48, 104, 56, 60
    e("v_lshlrev_b32 v7, 4, v1")
    e("s_lshl_b32 s28, s20, 13")
    e(f"s_add_u32 s28, s28, {WS_PART}")
    e("s_add_u32 s29, s28, 4096")
    for j in range(8):
        a.vmem(f"buffer_load_dwordx4 {vr(P+4*j,4)}, v7, s[16:19], s{28 + j//4} offen offset:{(j % 4)*1024}")
    e("v_mul_u32_u24 v8, 1152, v5")
    e("v_lshl_add_u32 v8, v6, 1, v8")
    a.vmem(f"buffer_load_dwordx2 {vr(X,2)}, v8, s[4:7], 0 offen")
    a.vmem(f"buffer_load_dwordx2 {vr(X+2,2)}, v8, s[4:7], 0 offen offset:32")
    e("v_lshlrev_b32 v9, 1, v6")
    a.vmem(f"buffer_load_dwordx2 {vr(D,2)}, v9, s[8:11], 0 offen")
    a.vmem(f"buffer_load_dwordx2 {vr(D+2,2)}, v9, s[8:11], 0 offen offset:32")
    e("v_lshlrev_b32 v10, 3, v5")
    e(f"v_add_u32 v10, {WS_STATS}, v10")
    a.vmem(f"buffer_load_dwordx2 {vr(ST,2)}, v10, s[16:19], 0 offen")
    e("v_lshlrev_b32 v11, 12, v6")
    e("v_lshl_add_u32 v11, v5, 1, v11")
    for k in range(8):
        dd = (k % 4) + 16 * (k // 4)
        e(f"s_mov_b32 s{30+k}, {WS_YT + dd*4096}")
    for k in range(8):
        a.vmem(f"buffer_load_ushort v{Y + k}, v11, s[16:19], s{30+k} offen")
    e("s_mov_b32 s40, 0xbfb8aa3b")
    a.wait(vm=0)
    final_math(e, P, X, Y, D, ST, ST + 1, 40, 64, 12)
    a.vmem(f"buffer_store_dwordx2 {vr(12,2)}, v8, s[12:15], 0 offen")
    a.vmem(f"buffer_store_dwordx2 {vr(14,2)}, v8, s[12:15], 0 offen offset:32")
    a.label("K3_END")
    e("s_endpgm")
    return kernel_head(name) + a.text() + "\n" + kernel_desc(name, 112, 112, 64)
```

```python
from asmgen import *

WS_UT = 0
WS_STATS = 0x240000
WS_YT = 0x250000
WS_PART = 0x500000
WS_SIZE = 0x1800000

EX = 0
TMP = 73728
RING = 90112
K1_LDS = RING + 4 * 16384

S_X, S_W1, S_W2, S_WS = 4, 8, 12, 16
S_WV, S_J, S_T, S_WN, S_WK = 20, 21, 22, 23, 24
S_RB = 25
S_BASE = {('S', 1): 26, ('F', 1, 0): 27, ('F', 1, 1): 28, ('S', 2): 31, ('F', 2, 0): 32, ('F', 2, 1): 33}
S_SOFF = 30
S_U0, S_U1 = 34, 35
S_TMP0, S_TMP1, S_TMP2, S_TMP3 = 36, 37, 38, 39
S_PU0, S_PU1, S_PUS = 40, 41, 42

V_LANE = 1
V_DF1, V_DS1, V_AF1, V_AS1 = 4, 8, 10, 14
V_DF2, V_DS2, V_AF2, V_AS2 = 16, 20, 22, 26
V_L16, V_L16H = 28, 29
V_EXH = 30
V_TW, V_TR = 31, 32
V_PART = 33
V_T = 34
V_PK = 42
V_X0 = 50
V_A = 64
V_ACC = (96, 160)
V_BX = 224
V_D = 44
V_XR = 184

LOG2E = 0x3fb8aa3b


def Breg(s, tt):
    idx = 4 * s + tt
    if idx < 64:
        return ar(4 * idx, 4)
    return vr(V_BX + 4 * (idx - 64), 4)


def Bread(a, s, tt):
    idx = 4 * s + tt
    off = idx * 1024
    if off < 65536:
        a.e(f"ds_read_b128 {Breg(s, tt)}, v{V_L16} offset:{off}")
    else:
        a.e(f"ds_read_b128 {Breg(s, tt)}, v{V_L16H} offset:{off-65536}")


def Areg(buf, f):
    return V_A + 16 * buf + 4 * f


def acc(b, f, tt):
    return V_ACC[b] + (f * 4 + tt) * 4


class Step:
    def __init__(self, n, kind, g, r, s):
        self.n, self.kind, self.g, self.r, self.s = n, kind, g, r, s


def make_steps():
    st = []
    for g in (1, 2):
        for i in range(9):
            st.append(Step(len(st), 'S', g, None, i))
        for r in (0, 1):
            for i in range(18):
                st.append(Step(len(st), 'F', g, r, i))
    return st


def silu_chain(regs, t0):
    out = []
    n = len(regs)
    for i, x in enumerate(regs):
        out.append(f"v_mul_f32 v{t0+i}, s{S_TMP3}, v{x}")
    for i in range(n):
        out.append(f"v_exp_f32 v{t0+i}, v{t0+i}")
    for i in range(n):
        out.append(f"v_add_f32 v{t0+i}, 1.0, v{t0+i}")
    for i in range(n):
        out.append(f"v_rcp_f32 v{t0+i}, v{t0+i}")
    for i, x in enumerate(regs):
        out.append(f"v_mul_f32 v{x}, v{x}, v{t0+i}")
    return out


WS_STAMP = 0x1700000


def gen_k1(name, dbg=False):
    a = Asm()
    e = a.e
    nst = [0]

    def stamp(tag="main"):
        if dbg and (tag == dbg or (dbg is True and tag == "main") or tag == "all"):
            i = nst[0]
            e(f"s_memrealtime s[{60+2*i}:{61+2*i}]")
            if i < 10:
                e(f"s_memtime s[{82+2*i}:{83+2*i}]")
            nst[0] += 1

    def dump_stamps():
        if not dbg:
            return
        e("s_waitcnt lgkmcnt(0)")
        e("v_mov_b32 v2, 0")
        for i in range(nst[0]):
            e(f"s_sub_u32 s44, s{60+2*i}, s60")
            e(f"v_writelane_b32 v2, s44, {i}")
            if i < 10:
                e(f"s_sub_u32 s44, s{82+2*i}, s82")
                e(f"v_writelane_b32 v2, s44, {16+i}")
        e(f"v_writelane_b32 v2, s60, 15")
        e(f"s_lshl_b32 s44, s2, 2")
        e(f"s_add_u32 s44, s44, s{S_WV}")
        e(f"s_lshl_b32 s44, s44, 7")
        e(f"s_add_u32 s44, s44, {WS_STAMP}")
        e(f"v_lshlrev_b32 v3, 2, v{V_LANE}")
        e(f"v_cmp_gt_u32 vcc, 32, v{V_LANE}")
        e("s_nop 4")
        e("s_and_saveexec_b64 s[46:47], vcc")
        e(f"buffer_store_dword v2, v3, s[{S_WS}:{S_WS+3}], s44 offen")
    steps = make_steps()
    NS = len(steps)
    e("s_cmp_ge_u32 s2, 256")
    e("s_cbranch_scc1 K1_END")
    stamp("all")
    e("s_load_dwordx2 s[44:45], s[0:1], 0")
    e("s_load_dwordx4 s[48:51], s[0:1], 64")
    e("s_load_dwordx2 s[46:47], s[0:1], 96")
    e(f"v_and_b32 v{V_LANE}, 63, v0")
    e("v_lshrrev_b32 v2, 6, v0")
    e(f"s_and_b32 s{S_J}, s2, 7")
    e(f"s_lshr_b32 s{S_T}, s2, 3")
    e(f"v_readfirstlane_b32 s{S_WV}, v2")
    e(f"v_and_b32 v2, 15, v{V_LANE}")
    e(f"v_lshrrev_b32 v3, 4, v{V_LANE}")
    e(f"s_and_b32 s{S_WN}, s{S_WV}, 1")
    e(f"s_lshr_b32 s{S_WK}, s{S_WV}, 1")
    e(f"s_lshl_b32 s{S_TMP0}, s{S_T}, 6")
    e(f"s_lshl_b32 s{S_TMP1}, s{S_WV}, 4")
    e(f"s_add_u32 s{S_TMP0}, s{S_TMP0}, s{S_TMP1}")
    e(f"v_add_u32 v40, s{S_TMP0}, v2")
    e("v_mul_u32_u24 v51, 1152, v40")
    e("v_lshl_add_u32 v51, v3, 4, v51")
    e("s_waitcnt lgkmcnt(0)")
    stamp("pro")
    for (S, lo, size) in ((S_X, 44, 2359296), (S_W1, 48, 5308416), (S_W2, 50, 5308416), (S_WS, 46, WS_SIZE)):
        e(f"s_mov_b32 s{S}, s{lo}")
        e(f"s_mov_b32 s{S+1}, s{lo+1}")
        e(f"s_mov_b32 s{S+2}, {size}")
        e(f"s_mov_b32 s{S+3}, 0x20000")
    xl = []
    for s in range(18):
        xl.append(a.vmem(f"buffer_load_dwordx4 {vr(V_XR+4*s,4)}, v51, s[{S_X}:{S_X+3}], 0 offen offset:{64*s}"))
    stamp("pro")
    e(f"s_mul_i32 s{S_TMP0}, s{S_T}, 324")
    e(f"v_add_u32 v52, s{S_TMP0}, v0")
    e(f"v_add_u32 v53, 256, v52")
    e(f"s_mul_i32 s{S_TMP1}, s{S_J}, 1152")
    e(f"s_mov_b32 s{S_TMP2}, 3641")
    for vv in (52, 53):
        e(f"v_mul_lo_u32 v54, v{vv}, s{S_TMP2}")
        e("v_lshrrev_b32 v54, 16, v54")
        e("v_mul_u32_u24 v55, 18, v54")
        e(f"v_sub_u32 v55, v{vv}, v55")
        e("v_mul_u32_u24 v54, 9216, v54")
        e("v_lshl_add_u32 v54, v55, 6, v54")
        e(f"v_add_u32 v{vv+6}, s{S_TMP1}, v54")
    e(f"s_mul_i32 s{S_TMP1}, s{S_J}, 663552")
    for vv in (52, 53):
        e(f"v_lshlrev_b32 v{vv}, 6, v{vv}")
        e(f"v_add_u32 v{vv}, s{S_TMP1}, v{vv}")
    e("v_cmp_gt_u32 vcc, 68, v0")
    e("s_nop 1")
    e("v_cndmask_b32 v59, v58, v59, vcc")
    e("v_cndmask_b32 v53, v52, v53, vcc")
    a.vmem(f"buffer_load_dword v43, v58, s[{S_W1}:{S_W1+3}], 0 offen")
    a.vmem(f"buffer_load_dword v43, v59, s[{S_W1}:{S_W1+3}], 0 offen")
    e(f"s_lshl_b32 s{S_RB}, s{S_WV}, 14")
    e(f"s_add_u32 s{S_RB}, s{S_RB}, {RING}")
    e(f"s_add_u32 s{S_U0}, s{S_WV}, s{S_T}")
    e(f"s_add_u32 s{S_U1}, s{S_U0}, 4")
    e(f"s_and_b32 s{S_U0}, s{S_U0}, 7")
    e(f"s_and_b32 s{S_U1}, s{S_U1}, 7")
    e(f"s_mul_i32 s{S_TMP0}, s{S_J}, 1152")
    e(f"s_lshl_b32 s{S_TMP1}, s{S_U0}, 7")
    e(f"s_add_u32 s{S_BASE[('F',1,0)]}, s{S_TMP0}, s{S_TMP1}")
    e(f"s_lshl_b32 s{S_TMP1}, s{S_U1}, 7")
    e(f"s_add_u32 s{S_BASE[('F',1,1)]}, s{S_TMP0}, s{S_TMP1}")
    e(f"s_lshl_b32 s{S_TMP1}, s{S_WN}, 6")
    e(f"s_add_u32 s{S_TMP1}, s{S_TMP1}, 1024")
    e(f"s_add_u32 s{S_TMP0}, s{S_TMP0}, s{S_TMP1}")
    e(f"s_mul_i32 s{S_TMP2}, s{S_WK}, {9*32*9216}")
    e(f"s_add_u32 s{S_BASE[('S',1)]}, s{S_TMP0}, s{S_TMP2}")
    e(f"s_mul_i32 s{S_TMP0}, s{S_J}, 663552")
    e(f"s_lshl_b32 s{S_TMP2}, s{S_U0}, 7")
    e(f"s_add_u32 s{S_BASE[('F',2,0)]}, s{S_TMP0}, s{S_TMP2}")
    e(f"s_lshl_b32 s{S_TMP2}, s{S_U1}, 7")
    e(f"s_add_u32 s{S_BASE[('F',2,1)]}, s{S_TMP0}, s{S_TMP2}")
    e(f"s_add_u32 s{S_TMP0}, s{S_TMP0}, s{S_TMP1}")
    e(f"s_mul_i32 s{S_TMP2}, s{S_WK}, {9*32*1152}")
    e(f"s_add_u32 s{S_BASE[('S',2)]}, s{S_TMP0}, s{S_TMP2}")
    e(f"s_lshl_b32 s{S_PU0}, s{S_U0}, 16")
    e(f"s_lshl_b32 s{S_PU1}, s{S_U1}, 16")
    e(f"s_lshl_b32 s{S_PUS}, s{S_WN}, 15")
    e(f"s_lshl_b32 s{S_TMP0}, s{S_WK}, 14")
    e(f"s_add_u32 s{S_PUS}, s{S_PUS}, s{S_TMP0}")
    e(f"s_add_u32 s{S_PUS}, s{S_PUS}, {8*65536}")
    L = V_LANE
    e(f"v_lshrrev_b32 v54, 3, v{L}")
    e(f"v_and_b32 v55, 7, v{L}")
    e(f"v_lshrrev_b32 v56, 2, v{L}")
    e(f"v_and_b32 v57, 3, v{L}")
    e(f"v_bfe_u32 v62, v{L}, 4, 1")
    e("v_lshlrev_b32 v62, 1, v62")
    e("v_xor_b32 v62, v55, v62")
    e("v_mul_u32_u24 v63, 9216, v54")
    for qq in range(4):
        if qq & 1:
            e("v_xor_b32 v2, 4, v62")
            e(f"v_lshl_add_u32 v{V_DF1+qq}, v2, 4, v63")
        else:
            e(f"v_lshl_add_u32 v{V_DF1+qq}, v62, 4, v63")
        if qq:
            e(f"v_add_u32 v{V_DF1+qq}, {qq*(8*9216-1024)}, v{V_DF1+qq}")
    e(f"v_bfe_u32 v62, v{L}, 5, 1")
    e("v_lshlrev_b32 v62, 1, v62")
    e("v_xor_b32 v62, v57, v62")
    e("v_mul_u32_u24 v63, 9216, v56")
    e(f"v_lshl_add_u32 v{V_DS1}, v62, 4, v63")
    e(f"v_add_u32 v{V_DS1+1}, {16*9216-1024}, v{V_DS1}")
    e(f"v_bfe_u32 v62, v{L}, 4, 2")
    e("v_lshlrev_b32 v62, 1, v62")
    e("v_xor_b32 v62, v55, v62")
    e("v_mul_u32_u24 v63, 1152, v54")
    e(f"v_lshl_add_u32 v{V_DF2}, v62, 4, v63")
    for qq in range(1, 4):
        e(f"v_add_u32 v{V_DF2+qq}, {qq*(8*1152-1024)}, v{V_DF2}")
    e(f"v_bfe_u32 v62, v{L}, 4, 1")
    e("v_lshlrev_b32 v62, 1, v62")
    e("v_xor_b32 v62, v57, v62")
    e("v_mul_u32_u24 v63, 1152, v56")
    e(f"v_lshl_add_u32 v{V_DS2}, v62, 4, v63")
    e(f"v_add_u32 v{V_DS2+1}, {16*1152-1024}, v{V_DS2}")

    dma_seq = {}

    def dma_ops(n):
        st = steps[n]
        g = st.g
        srd = S_W1 if g == 1 else S_W2
        pitch = 9216 if g == 1 else 1152
        base = S_BASE[('S', g)] if st.kind == 'S' else S_BASE[('F', g, st.r)]
        vo = {('S', 1): V_DS1, ('F', 1): V_DF1, ('S', 2): V_DS2, ('F', 2): V_DF2}[(st.kind, g)]
        cnt = 2 if st.kind == 'S' else 4
        ops = []

        def setup():
            e(f"s_add_u32 m0, s{S_RB}, {(n % 4)*4096}")
            e(f"s_add_u32 s{S_SOFF}, s{base}, {st.s*32*pitch}")
        ops.append(setup)
        for qq in range(cnt):
            def ld(qq=qq):
                off = f" offset:{qq*1024}" if qq else ""
                dma_seq[n] = a.vmem(f"buffer_load_dwordx4 v{vo+qq}, s[{srd}:{srd+3}], s{S_SOFF} offen{off} lds")
            ops.append(ld)
        return ops

    for n in range(4):
        for op in dma_ops(n):
            op()
    a.vmem(f"buffer_load_dword v43, v52, s[{S_W2}:{S_W2+3}], 0 offen")
    a.vmem(f"buffer_load_dword v43, v53, s[{S_W2}:{S_W2+3}], 0 offen")

    stamp("pro")
    e(f"v_and_b32 v2, 15, v{L}")
    e(f"v_lshrrev_b32 v3, 4, v{L}")
    e("v_lshrrev_b32 v52, 2, v2")
    e("v_and_b32 v53, 3, v2")
    e("v_lshrrev_b32 v54, 1, v53")
    e("v_and_b32 v55, 1, v53")
    e("v_lshlrev_b32 v55, 3, v55")
    e(f"v_add_u32 v55, s{S_RB}, v55")
    e("v_and_b32 v56, 1, v3")
    e("v_lshrrev_b32 v57, 1, v52")
    e("v_lshl_add_u32 v58, v3, 3, v52")
    e("v_lshl_or_b32 v59, v56, 1, v57")
    e("v_lshlrev_b32 v59, 1, v59")
    e("v_xor_b32 v59, v54, v59")
    e("v_lshl_add_u32 v59, v59, 4, v55")
    e(f"v_lshl_add_u32 v{V_AF1}, v58, 7, v59")
    for f in range(1, 4):
        e(f"v_xor_b32 v{V_AF1+f}, {f << 5}, v{V_AF1}")
    e("v_lshlrev_b32 v59, 1, v56")
    e("v_xor_b32 v59, v54, v59")
    e("v_lshl_add_u32 v59, v59, 4, v55")
    e(f"v_lshl_add_u32 v{V_AS1}, v58, 6, v59")
    e(f"v_xor_b32 v{V_AS1+1}, 32, v{V_AS1}")
    e("v_lshl_add_u32 v58, v3, 2, v52")
    e("v_bfe_u32 v59, v58, 1, 2")
    e("v_lshlrev_b32 v59, 1, v59")
    e("v_xor_b32 v59, v54, v59")
    e("v_lshl_add_u32 v59, v59, 4, v55")
    e(f"v_lshl_add_u32 v{V_AF2}, v58, 7, v59")
    for f in range(1, 4):
        e(f"v_xor_b32 v{V_AF2+f}, {f << 5}, v{V_AF2}")
    e("v_lshlrev_b32 v59, 1, v56")
    e("v_xor_b32 v59, v54, v59")
    e("v_lshl_add_u32 v59, v59, 4, v55")
    e(f"v_lshl_add_u32 v{V_AS2}, v58, 6, v59")
    e(f"v_xor_b32 v{V_AS2+1}, 32, v{V_AS2}")
    e(f"v_lshlrev_b32 v{V_L16}, 4, v{L}")
    e(f"v_add_u32 v{V_L16H}, 0x10000, v{V_L16}")
    e(f"s_lshl_b32 s{S_TMP0}, s{S_WV}, 12")
    e(f"s_add_u32 s{S_TMP0}, s{S_TMP0}, {TMP}")
    e(f"v_add_u32 v{V_TW}, s{S_TMP0}, v{V_L16}")
    e(f"s_xor_b32 s{S_TMP1}, s{S_WV}, 2")
    e(f"s_lshl_b32 s{S_TMP1}, s{S_TMP1}, 12")
    e(f"s_add_u32 s{S_TMP1}, s{S_TMP1}, {TMP}")
    e(f"v_add_u32 v{V_TR}, s{S_TMP1}, v{V_L16}")
    e(f"s_mul_i32 s{S_TMP0}, s{S_T}, {72*8}")
    e(f"s_add_u32 s{S_TMP0}, s{S_TMP0}, s{S_J}")
    e(f"s_lshl_b32 s{S_TMP0}, s{S_TMP0}, 10")
    e(f"s_add_u32 s{S_TMP0}, s{S_TMP0}, {WS_PART}")
    e(f"v_add_u32 v{V_PART}, s{S_TMP0}, v{V_L16}")

    a.c("LayerNorm: row sums through MFMA with an all-ones A operand")
    for i in range(4):
        e(f"v_mov_b32 v{44+i}, 0x3f803f80")
    stamp("pro")
    a.wait(vm=a.vm_n(xl[0]))
    stamp("pro")
    for s in range(18):
        a.wait(vm=a.vm_n(xl[s]))
        cin = "0" if s == 0 else vr(48, 4)
        e(f"v_mfma_f32_16x16x32_bf16 {vr(48,4)}, {vr(44,4)}, {vr(V_XR+4*s,4)}, {cin}")
    stamp()
    stamp("pro")
    e("s_nop 7")
    e(f"v_mul_f32 v34, 0x3ae38e39, v48")
    e("v_cvt_pk_bf16_f32 v35, v34, v34")
    e("v_lshlrev_b32 v36, 16, v35")
    e("v_mov_b32 v37, v36")
    e("v_sub_f32 v34, v34, v36")
    for k in range(72):
        d = V_D + 2 * k
        e(f"v_lshlrev_b32 v{d}, 16, v{V_XR+k}")
        e(f"v_and_b32 v{d+1}, 0xffff0000, v{V_XR+k}")
    for k in range(72):
        d = V_D + 2 * k
        e(f"v_pk_add_f32 {vr(d,2)}, {vr(d,2)}, {vr(36,2)} neg_lo:[0,1] neg_hi:[0,1]")
    e(f"v_pk_mul_f32 {vr(38,2)}, {vr(V_D,2)}, {vr(V_D,2)}")
    e(f"v_pk_mul_f32 {vr(2,2)}, {vr(V_D+2,2)}, {vr(V_D+2,2)}")
    for k in range(2, 72):
        d = V_D + 2 * k
        r = 38 if k % 2 == 0 else 2
        e(f"v_pk_fma_f32 {vr(r,2)}, {vr(d,2)}, {vr(d,2)}, {vr(r,2)}")
    e(f"v_pk_add_f32 {vr(38,2)}, {vr(38,2)}, {vr(2,2)}")
    e("v_add_f32 v38, v38, v39")
    e("v_mov_b32 v39, v38")
    e("s_nop 1")
    e("v_permlane32_swap_b32 v38, v39")
    e("v_add_f32 v38, v38, v39")
    e("v_mov_b32 v39, v38")
    e("s_nop 1")
    e("v_permlane16_swap_b32 v38, v39")
    e("v_add_f32 v38, v38, v39")
    e("v_mul_f32 v38, 0x3ae38e39, v38")
    e("v_fma_f32 v38, -v34, v34, v38")
    e("v_cvt_pk_bf16_f32 v38, v38, v38")
    e("v_lshlrev_b32 v38, 16, v38")
    e("v_add_f32 v38, 0x3727c5ac, v38")
    e("v_cvt_pk_bf16_f32 v38, v38, v38")
    e("v_lshlrev_b32 v38, 16, v38")
    e("v_sqrt_f32 v38, v38")
    e("s_nop 0")
    e("v_cvt_pk_bf16_f32 v38, v38, v38")
    e("v_lshlrev_b32 v38, 16, v38")
    e("v_rcp_f32 v38, v38")
    e("s_nop 0")
    e("v_mov_b32 v39, v38")
    stamp("pro")
    e(f"s_cmp_lg_u32 s{S_J}, 0")
    e("s_cbranch_scc1 K1_NOSTAT")
    e("v_mov_b32 v2, v36")
    e("v_mov_b32 v3, v38")
    e("v_lshlrev_b32 v41, 3, v40")
    e(f"v_add_u32 v41, {WS_STATS}, v41")
    a.vmem(f"buffer_store_dwordx2 {vr(2,2)}, v41, s[{S_WS}:{S_WS+3}], 0 offen", counted=False)
    a.label("K1_NOSTAT")
    e(f"s_lshl_b32 s{S_TMP0}, s{S_WV}, 10")
    e(f"v_add_u32 v41, s{S_TMP0}, v{V_L16}")
    e(f"v_add_u32 v42, 0x10000, v41")
    for s in range(18):
        for k in range(4 * s, 4 * s + 4):
            d = V_D + 2 * k
            e(f"v_pk_mul_f32 {vr(d,2)}, {vr(d,2)}, {vr(38,2)}")
        for k in range(4 * s, 4 * s + 4):
            d = V_D + 2 * k
            e(f"v_cvt_pk_bf16_f32 v{V_D+8*s+(k-4*s)}, v{d}, v{d+1}")
        off = s * 4096
        if off < 65536:
            e(f"ds_write_b128 v41, {vr(V_D+8*s,4)} offset:{off}")
        else:
            e(f"ds_write_b128 v42, {vr(V_D+8*s,4)} offset:{off-65536}")
    a.wait(lgkm=0)
    e("s_barrier")

    stamp()
    stamp("pro")
    a.c("transposed publish of the normalised activations: 16-channel blocks")
    e(f"v_and_b32 v2, 15, v{L}")
    e(f"v_lshrrev_b32 v3, 4, v{L}")
    e("v_lshrrev_b32 v52, 2, v2")
    e("v_and_b32 v53, 3, v2")
    e("v_lshrrev_b32 v54, 1, v3")
    e("v_lshlrev_b32 v54, 10, v54")
    e("v_lshrrev_b32 v55, 1, v53")
    e("v_lshl_add_u32 v54, v55, 8, v54")
    e("v_and_b32 v55, 1, v3")
    e("v_lshl_add_u32 v55, v55, 3, v52")
    e("v_lshl_add_u32 v54, v55, 4, v54")
    e("v_and_b32 v55, 1, v53")
    e("v_lshl_add_u32 v54, v55, 3, v54")
    e("v_lshlrev_b32 v55, 12, v2")
    e("v_lshl_add_u32 v55, v3, 4, v55")
    e(f"s_lshl_b32 s{S_TMP0}, s{S_T}, 7")
    e(f"v_add_u32 v55, s{S_TMP0}, v55")

    def ut_block():
        e(f"s_lshr_b32 s{S_TMP2}, s{S_TMP1}, 1")
        e(f"s_lshl_b32 s{S_TMP2}, s{S_TMP2}, 12")
        e(f"s_and_b32 s{S_TMP3}, s{S_TMP1}, 1")
        e(f"s_lshl_b32 s{S_TMP3}, s{S_TMP3}, 9")
        e(f"s_add_u32 s{S_TMP2}, s{S_TMP2}, s{S_TMP3}")
        e(f"v_add_u32 v56, s{S_TMP2}, v54")
        for h2 in range(2):
            for p in range(2):
                e(f"ds_read_b64_tr_b16 {vr(V_T+4*h2+2*p,2)}, v56 offset:{h2*2048+p*64}")
        e(f"s_lshl_b32 s{S_TMP2}, s{S_TMP1}, 16")
        a.wait(lgkm=0)

    e(f"s_lshl_b32 s{S_TMP1}, s{S_WV}, 3")
    e(f"s_add_u32 s{S_TMP1}, s{S_TMP1}, s{S_J}")
    ut_block()
    for h2 in range(2):
        a.vmem(f"buffer_store_dwordx4 {vr(V_T+4*h2,4)}, v55, s[{S_WS}:{S_WS+3}], s{S_TMP2} offen offset:{64*h2}")
    e(f"s_cmp_lg_u32 s{S_WV}, 0")
    e("s_cbranch_scc1 K1_NOUT2")
    e(f"s_cmp_ge_u32 s{S_J}, 4")
    e("s_cbranch_scc1 K1_NOUT2")
    e(f"s_add_u32 s{S_TMP1}, s{S_J}, 32")
    e("s_nop 1")
    ut_block()
    for h2 in range(2):
        a.vmem(f"buffer_store_dwordx4 {vr(V_T+4*h2,4)}, v55, s[{S_WS}:{S_WS+3}], s{S_TMP2} offen offset:{64*h2}", counted=False)
    a.label("K1_NOUT2")
    e(f"s_mov_b32 s{S_TMP3}, 0xbfb8aa3b")

    def a_reads(n):
        st = steps[n]
        buf = n % 2
        slot = (n % 4) * 4096
        out = []
        if st.kind == 'F':
            va = V_AF1 if st.g == 1 else V_AF2
            pst = 512 if st.g == 1 else 2048
            nf = 4
        else:
            va = V_AS1 if st.g == 1 else V_AS2
            pst = 256 if st.g == 1 else 1024
            nf = 2
        for f in range(nf):
            for p in range(2):
                r = Areg(buf, f) + 2 * p
                out.append(f"ds_read_b64_tr_b16 {vr(r,2)}, v{va+f} offset:{slot+p*pst}")
        return out

    def emit_step(n, wk, filler, bjit):
        st = steps[n]
        vmn = a.vm_n(dma_seq[n + 1]) if n + 1 < NS else None
        a.wait(vm=vmn, lgkm=0)
        slots = []
        if n + 1 < NS:
            slots += [("ds", x) for x in a_reads(n + 1)]
        slots += [("ds", x) for x in bjit]
        if n + 4 < NS:
            slots += [("op", x) for x in dma_ops(n + 4)]
        if st.kind == 'F':
            b = {(1, 0): 0, (1, 1): 1, (2, 0): 1, (2, 1): 0}[(st.g, st.r)]
            mf = [(f, tt) for f in range(4) for tt in range(4)]
            s = st.s
        else:
            b = 1 if st.g == 1 else 0
            mf = [(f, tt) for f in range(2) for tt in range(4)]
            s = 9 * wk + st.s
        first = (st.s == 0)
        nm = len(mf)
        per = -(-len(slots) // nm)
        si = 0
        nfill = -(-len(filler) // max(1, filler_left[0])) if filler else 0
        for m, (f, tt) in enumerate(mf):
            c = acc(b, f, tt)
            cin = "0" if first else vr(c, 4)
            e(f"v_mfma_f32_16x16x32_bf16 {vr(c,4)}, {vr(Areg(n % 2, f),4)}, {Breg(s, tt)}, {cin}")
            for _ in range(per):
                if si < len(slots):
                    k, x = slots[si]
                    si += 1
                    if k == "ds":
                        e(x)
                    else:
                        x()
            want = (nfill * (m + 1)) // nm - (nfill * m) // nm
            for _ in range(want):
                if filler:
                    x = filler.pop(0)
                    if callable(x):
                        x()
                    else:
                        e(x)
        assert si == len(slots)
        filler_left[0] -= 1

    filler_left = [1]

    def run_steps(ns, wk, filler, bjit_fn=None):
        filler_left[0] = len(ns)
        for n in ns:
            emit_step(n, wk, filler, bjit_fn(n) if bjit_fn else [])
        assert not filler, len(filler)

    def bread_str(s, tt):
        idx = 4 * s + tt
        off = idx * 1024
        if off < 65536:
            return f"ds_read_b128 {Breg(s, tt)}, v{V_L16} offset:{off}"
        return f"ds_read_b128 {Breg(s, tt)}, v{V_L16H} offset:{off-65536}"

    def split_phase(g, n0, tag, filler):
        e(f"s_cmp_eq_u32 s{S_WK}, 0")
        e(f"s_cbranch_scc0 {tag}_WK1")
        vm_save = a.vm
        seq_save = dict(dma_seq)
        for wk in (0, 1):
            if wk == 1:
                a.label(f"{tag}_WK1")
                a.vm = vm_save
                dma_seq.clear()
                dma_seq.update(seq_save)
            own = [9 * wk + i for i in range(9)]
            oth = [9 * (1 - wk) + i for i in range(9)]
            for tt in range(4):
                e(bread_str(own[0], tt))
            if g == 1:
                a.wait(vm=a.vm_n(dma_seq[n0]))
                for x in a_reads(n0):
                    e(x)

            def bj(n, own=own, oth=oth):
                i = n - n0
                o = []
                if i + 1 < 9:
                    o += [bread_str(own[i + 1], tt) for tt in range(4)]
                o += [bread_str(oth[i], tt) for tt in range(4)]
                return o
            run_steps(list(range(n0, n0 + 9)), wk, list(filler), bj)
            b = 1 if g == 1 else 0
            e("s_nop 7")
            give = [2 * (1 - wk), 2 * (1 - wk) + 1]
            k = 0
            for f in range(2):
                for tt in give:
                    e(f"ds_write_b128 v{V_TW}, {vr(acc(b,f,tt),4)} offset:{k*1024}")
                    k += 1
            a.wait(lgkm=0)
            if wk == 1:
                for f in range(2):
                    for x in range(8):
                        e(f"v_mov_b32 v{acc(b,f,0)+x}, v{acc(b,f,2)+x}")
            if wk == 0:
                e(f"s_branch {tag}_JOIN")
        a.label(f"{tag}_JOIN")
        e("s_barrier")

    def split_finish(g):
        b = 1 if g == 1 else 0
        F = []
        R = V_X0
        for f in range(2):
            for k in range(2):
                F.append(f"ds_read_b128 {vr(R + 4*k, 4)}, v{V_TR} offset:{(f*2+k)*1024}")
            F.append("s_waitcnt lgkmcnt(0)")
            for k in range(2):
                for x in range(4):
                    F.append(f"v_add_f32 v{acc(b,f,k)+x}, v{acc(b,f,k)+x}, v{R+4*k+x}")
        for k in range(2):
            pk = V_PK + 4 * k
            if g == 1:
                for f in range(2):
                    F += silu_chain([acc(b, f, k) + x for x in range(4)], V_T + 4 * f)
            for f in range(2):
                for h in range(2):
                    F.append(f"v_cvt_pk_bf16_f32 v{pk+2*f+h}, v{acc(b,f,k)+2*h}, v{acc(b,f,k)+2*h+1}")
            if g == 1:
                F.append(f"ds_write_b128 v{V_EXH}, {vr(pk,4)} offset:{k*1024}")
            else:
                def st(k=k, pk=pk):
                    e(f"s_add_u32 s{S_TMP0}, s{S_PUS}, {k*8192}")
                    a.vmem(f"buffer_store_dwordx4 {vr(pk,4)}, v{V_PART}, s[{S_WS}:{S_WS+3}], s{S_TMP0} offen")
                F.append(st)
        return F

    def unit_epilogue(g, b, su, packed=False):
        F = []
        k = 0
        for sg in range(2):
            for tt in range(4):
                pk = V_PK + 4 * (k % 2)
                if g == 1:
                    for h in range(2):
                        F += silu_chain([acc(b, 2 * sg + h, tt) + x for x in range(4)], V_T + 4 * h)
                for h in range(2):
                    c = acc(b, 2 * sg + h, tt)
                    F.append(f"v_cvt_pk_bf16_f32 v{pk+2*h}, v{c}, v{c+1}")
                    F.append(f"v_cvt_pk_bf16_f32 v{pk+2*h+1}, v{c+2}, v{c+3}")
                if g == 1:
                    F.append(f"ds_write_b128 v{V_EXH}, {vr(pk,4)} offset:{(sg*4+tt)*1024}")
                else:
                    def st(sg=sg, tt=tt, pk=pk):
                        e(f"s_add_u32 s{S_TMP0}, s{su}, {(sg*4+tt)*8192}")
                        a.vmem(f"buffer_store_dwordx4 {vr(pk,4)}, v{V_PART}, s[{S_WS}:{S_WS+3}], s{S_TMP0} offen")
                    F.append(st)
                k += 1
        return F

    def set_exh(expr_sgpr_setup):
        expr_sgpr_setup()
        e(f"v_add_u32 v{V_EXH}, s{S_TMP0}, v{V_L16}")

    def run_filler_plain(F):
        for x in F:
            if callable(x):
                x()
            else:
                e(x)

    stamp()
    a.c("GEMM1 split unit")
    split_phase(1, 0, "K1_G1S", [])
    def exh_split():
        e(f"s_add_u32 s{S_TMP0}, s{S_WN}, 16")
        e(f"s_lshl_b32 s{S_TMP0}, s{S_TMP0}, 12")
        e(f"s_lshl_b32 s{S_TMP1}, s{S_WK}, 11")
        e(f"s_add_u32 s{S_TMP0}, s{S_TMP0}, s{S_TMP1}")
    set_exh(exh_split)
    stamp()
    a.c("GEMM1 round 0")
    run_steps(list(range(9, 27)), 0, split_finish(1))
    set_exh(lambda: e(f"s_lshl_b32 s{S_TMP0}, s{S_U0}, 13"))
    a.c("GEMM1 round 1")
    run_steps(list(range(27, 45)), 0, unit_epilogue(1, 0, None))
    stamp()
    set_exh(lambda: e(f"s_lshl_b32 s{S_TMP0}, s{S_U1}, 13"))
    e("s_nop 4")
    run_filler_plain(unit_epilogue(1, 1, None))
    a.wait(lgkm=0)
    e("s_barrier")
    stamp()
    a.c("GEMM2 split unit")
    split_phase(2, 45, "K1_G2S", [])
    stamp()
    a.c("GEMM2 round 0")
    run_steps(list(range(54, 72)), 0, split_finish(2))
    a.c("GEMM2 round 1")
    run_steps(list(range(72, 90)), 0, unit_epilogue(2, 1, S_PU0))
    stamp()
    e("s_nop 7")
    run_filler_plain(unit_epilogue(2, 0, S_PU1))
    e("s_waitcnt vmcnt(0)")
    stamp()
    dump_stamps()
    a.label("K1_END")
    e("s_endpgm")
    return kernel_head(name) + a.text() + "\n" + kernel_desc(name, 512, 256)
```

```python
from asmgen import *
import struct

WS_UT = 0
WS_YT = 0x250000

def fbits(x):
    return struct.unpack('<I', struct.pack('<f', x))[0]

TAB = 0
TAB_PITCH = 272
KP = 14464
KR0 = 16000
KR1 = KR0 + 5120 + 64
UB = KR1 + 5120
WAVE_LDS = 31232
assert UB + 4576 <= WAVE_LDS

ROWS = list(range(8)) + [256, 258, 260, 262, 512, 516, 768, 772, 1024, 1280, 1536, 1792, 2048]


class S4Regs:
    def __init__(self):
        self.lane = 1
        self.t = 2
        self.base = 10
        self.raw = 12
        self.dt = 21
        self.zr, self.zi = 22, 23
        self.w1, self.w2, self.w4, self.w8, self.w16, self.w256 = 24, 26, 28, 30, 32, 34
        self.x = 36
        self.e0, self.e1 = 40, 42
        self.tmp = 44
        self.cv = 52
        self.fa, self.fb = 56, 60
        self.kacc = 72
        self.acc = 96
        self.af = 128
        self.ad = 160


def cmul(a, d, x, w, t):
    return [f"v_pk_mul_f32 {vr(t,2)}, {vr(x,2)}, {vr(w,2)} op_sel:[0,0] op_sel_hi:[1,0]",
            f"v_pk_fma_f32 {vr(d,2)}, {vr(x,2)}, {vr(w,2)}, {vr(t,2)} op_sel:[1,1,0] op_sel_hi:[0,1,1] neg_lo:[1,0,0]"]


def gen_s4_body(a, R, s_ch, s_lds, srd_par, srd_ws, s_tmp, publish_sc=""):
    e = a.e
    L = R.lane
    st = s_tmp
    e(f"s_lshl_b32 s{st}, s{s_ch}, 8")
    e(f"v_lshlrev_b32 v{R.t}, 1, v{L}")
    ld = []
    k = 0
    for nm in ("la", "ai", "cr", "ci"):
        for p in range(2):
            ld.append(a.vmem(f"buffer_load_ushort v{R.raw+k}, v{R.t}, s[{srd_par[nm]}:{srd_par[nm]+3}], s{st} offen offset:{128*p}"))
            k += 1
    e(f"s_lshl_b32 s{st+1}, s{s_ch}, 1")
    e(f"v_mov_b32 v{R.t+1}, 0")
    ld.append(a.vmem(f"buffer_load_ushort v{R.raw+8}, v{R.t+1}, s[{srd_par['ldt']}:{srd_par['ldt']+3}], s{st+1} offen"))
    e(f"s_lshl_b32 s{st+2}, s{s_ch}, 12")
    e(f"s_add_u32 s{st+2}, s{st+2}, {WS_UT}")
    e(f"v_lshlrev_b32 v{R.t+2}, 4, v{L}")
    e(f"s_add_u32 m0, s{s_lds}, {UB+480}")
    e("s_nop 0")
    useq = None
    for kq in range(4):
        off = f" offset:{kq*1024}" if kq else ""
        useq = a.vmem(f"buffer_load_dwordx4 v{R.t+2}, s[{srd_ws}:{srd_ws+3}], s{st+2} offen{off}{publish_sc} lds")
    for i in range(4):
        e(f"v_mov_b32 v{R.tmp+i}, 0")
    e(f"v_add_u32 v{R.t+3}, s{s_lds}, v{R.t+2}")
    e(f"v_cmp_gt_u32 vcc, 30, v{L}")
    e("s_nop 1")
    e(f"s_and_saveexec_b64 s[{st+4}:{st+5}], vcc")
    e(f"ds_write_b128 v{R.t+3}, {vr(R.tmp,4)} offset:{UB}")
    e(f"s_mov_b64 exec, s[{st+4}:{st+5}]")
    e(f"v_lshlrev_b32 v{R.base}, 2, v{L}")
    e(f"v_add_u32 v{R.base}, s{s_lds}, v{R.base}")
    e(f"v_and_b32 v{R.t}, 31, v{L}")
    e(f"v_lshrrev_b32 v{R.t+1}, 5, v{L}")
    e(f"v_mul_u32_u24 v{R.t+4}, {TAB_PITCH}, v{R.t}")
    e(f"v_lshl_add_u32 v{R.t+4}, v{R.t+1}, 4, v{R.t+4}")
    e(f"v_add_u32 v{R.ad}, s{s_lds}, v{R.t+4}")
    e(f"v_add_u32 v{R.ad+1}, {21*TAB_PITCH}, v{R.ad}")
    LOG2E = fbits(1.4426950408889634)
    e(f"s_mov_b32 s{st+3}, {LOG2E:#x}")
    a.wait(vm=a.vm_n(ld[8]))
    e(f"v_lshlrev_b32 v{R.dt}, 16, v{R.raw+8}")
    e(f"v_mul_f32 v{R.dt}, s{st+3}, v{R.dt}")
    e(f"v_exp_f32 v{R.dt}, v{R.dt}")
    e("s_nop 0")
    e(f"v_cvt_pk_bf16_f32 v{R.dt}, v{R.dt}, v{R.dt}")
    e(f"v_lshlrev_b32 v{R.dt}, 16, v{R.dt}")
    INV2PI = fbits(0.15915494309189535)

    def wdirect(d, p):
        t = R.t
        out = [f"v_mul_f32 v{t}, {float(p)!r}, v{R.zr}" if p != 1 else f"v_mov_b32 v{t}, v{R.zr}",
               f"v_mul_f32 v{t+1}, {float(p)!r}, v{R.zi}" if p != 1 else f"v_mov_b32 v{t+1}, v{R.zi}",
               f"v_exp_f32 v{t}, v{t}",
               f"v_fract_f32 v{t+1}, v{t+1}",
               f"s_nop 0",
               f"v_cos_f32 v{d}, v{t+1}",
               f"v_sin_f32 v{d+1}, v{t+1}",
               f"s_nop 0",
               f"v_mul_f32 v{d}, v{d}, v{t}",
               f"v_mul_f32 v{d+1}, v{d+1}, v{t}"]
        return [x.replace("8.0,", f"{fbits(8.0):#x},").replace("256.0,", f"{fbits(256.0):#x},") for x in out]

    for p in range(2):
        la, ai, cr, ci = R.raw + p, R.raw + 2 + p, R.raw + 4 + p, R.raw + 6 + p
        a.c(f"kernel tables, modes {64*p}..{64*p+63}")
        e(f"v_lshlrev_b32 v{R.t}, 16, v{la}")
        e(f"v_mul_f32 v{R.t}, s{st+3}, v{R.t}")
        e(f"v_exp_f32 v{R.t}, v{R.t}")
        e(f"v_lshlrev_b32 v{R.t+1}, 16, v{ai}")
        e(f"v_cvt_pk_bf16_f32 v{R.t}, v{R.t}, v{R.t}")
        e(f"v_lshlrev_b32 v{R.t}, 16, v{R.t}")
        e(f"v_mul_f32 v{R.zr}, -v{R.t}, v{R.dt}")
        e(f"v_mul_f32 v{R.zi}, v{R.t+1}, v{R.dt}")
        e(f"v_mul_f32 v{R.zr}, s{st+3}, v{R.zr}")
        e(f"v_mul_f32 v{R.zi}, {INV2PI:#x}, v{R.zi}")
        e(f"v_lshlrev_b32 v{R.x}, 16, v{cr}")
        e(f"v_lshlrev_b32 v{R.x+1}, 16, v{ci}")
        e(f"v_mul_f32 v{R.x}, v{R.x}, v{R.dt}")
        e(f"v_mul_f32 v{R.x+1}, v{R.x+1}, v{R.dt}")
        e(f"v_add_f32 v{R.x}, v{R.x}, v{R.x}")
        e(f"v_add_f32 v{R.x+1}, v{R.x+1}, v{R.x+1}")
        for d, pw in ((R.w1, 1), (R.w8, 8), (R.w256, 256)):
            for x in wdirect(d, pw):
                e(x)
        for x in cmul(a, R.w2, R.w1, R.w1, R.tmp) + cmul(a, R.w16, R.w8, R.w8, R.tmp + 2) + cmul(a, R.w4, R.w2, R.w2, R.tmp):
            e(x)
        if p == 1:
            a.wait(lgkm=0)
        ncv = [0]

        def put(row, reg, neg):
            c = R.cv + (ncv[0] % 4)
            ncv[0] += 1
            n = "-" if neg else ""
            return [f"v_cvt_pk_bf16_f32 v{c}, v{reg}, {n}v{reg+1}",
                    f"ds_write_b32 v{R.base}, v{c} offset:{TAB + row*TAB_PITCH}"]

        XA, XB = R.x, R.x + 2
        xs = []
        xs.append(put(0, XA, False))
        xs.append(cmul(a, XB, XA, R.w256, R.tmp + 4))
        for r in range(1, 8):
            xs.append(cmul(a, XA, XA, R.w1, R.tmp + 6) + put(r, XA, False))
        xs.append(put(8, XB, False))
        xs.append(cmul(a, XA, XB, R.w2, R.tmp + 6) + put(9, XA, False))
        xs.append(cmul(a, XB, XB, R.w256, R.tmp + 4))
        xs.append(cmul(a, XA, XA, R.w2, R.tmp + 6) + put(10, XA, False))
        xs.append(cmul(a, XA, XA, R.w2, R.tmp + 6) + put(11, XA, False))
        xs.append(put(12, XB, False))
        xs.append(cmul(a, XA, XB, R.w4, R.tmp + 6) + put(13, XA, False))
        xs.append(cmul(a, XB, XB, R.w256, R.tmp + 4) + put(14, XB, False))
        xs.append(cmul(a, XA, XB, R.w4, R.tmp + 6) + put(15, XA, False))
        for r in range(16, 21):
            xs.append(cmul(a, XB, XB, R.w256, R.tmp + 4) + put(r, XB, False))
        es = []
        es.append([f"v_mov_b32 v{R.e0}, 1.0", f"v_mov_b32 v{R.e0+1}, 0", f"v_mov_b32 v{R.e1}, v{R.w8}", f"v_mov_b32 v{R.e1+1}, v{R.w8+1}"]
                  + put(21, R.e0, True) + put(22, R.e1, True))
        for c in range(2, 32, 2):
            m0 = cmul(a, R.e0, R.e0, R.w16, R.tmp)
            m1 = cmul(a, R.e1, R.e1, R.w16, R.tmp + 2)
            es.append([m0[0], m1[0], m0[1], m1[1]] + put(21 + c, R.e0, True) + put(22 + c, R.e1, True))
        n = max(len(xs), len(es))
        for i in range(n):
            if i < len(es):
                for x in es[i]:
                    e(x)
            if i < len(xs):
                for x in xs[i]:
                    e(x)
        for i in range(len(xs), n):
            pass
        a.wait(lgkm=0)
        for s in range(8):
            fa, fb = R.fa + 8 * (s % 2), R.fb + 8 * (s % 2)
            if s == 0:
                e(f"ds_read_b128 {vr(fa,4)}, v{R.ad} offset:{TAB}")
                e(f"ds_read_b128 {vr(fb,4)}, v{R.ad+1} offset:{TAB}")
            if s + 1 < 8:
                fa2, fb2 = R.fa + 8 * ((s + 1) % 2), R.fb + 8 * ((s + 1) % 2)
                e(f"ds_read_b128 {vr(fa2,4)}, v{R.ad} offset:{TAB + (s+1)*32}")
                e(f"ds_read_b128 {vr(fb2,4)}, v{R.ad+1} offset:{TAB + (s+1)*32}")
                a.wait(lgkm=2)
            else:
                a.wait(lgkm=0)
            cin = "0" if (p == 0 and s == 0) else vr(R.kacc, 16)
            e(f"v_mfma_f32_32x32x16_bf16 {vr(R.kacc,16)}, {vr(fa,4)}, {vr(fb,4)}, {cin}")
    a.c("compact kernel table")
    col, h = R.t, R.t + 1
    e(f"v_and_b32 v{col}, 31, v{L}")
    e(f"v_lshrrev_b32 v{h}, 5, v{L}")
    A0, A1, A2, A3, A4 = R.ad + 2, R.ad + 3, R.ad + 4, R.ad + 5, R.ad + 6
    e(f"v_lshlrev_b32 v{A0}, 4, v{col}")
    e(f"v_lshl_add_u32 v{A0}, v{h}, 3, v{A0}")
    e(f"v_add_u32 v{A0}, s{s_lds}, v{A0}")
    e(f"v_cmp_eq_u32 vcc, 0, v{h}")
    e(f"v_lshlrev_b32 v{R.t+2}, 3, v{col}")
    e(f"v_lshlrev_b32 v{R.t+3}, 2, v{col}")
    e(f"v_add_u32 v{R.t+4}, 512, v{R.t+2}")
    e(f"v_add_u32 v{R.t+5}, 768, v{R.t+3}")
    e(f"v_cndmask_b32 v{A1}, v{R.t+5}, v{R.t+4}, vcc")
    e(f"v_add_u32 v{R.t+4}, 516, v{R.t+2}")
    e(f"v_add_u32 v{R.t+5}, 896, v{R.t+3}")
    e(f"v_cndmask_b32 v{A2}, v{R.t+5}, v{R.t+4}, vcc")
    e(f"v_lshlrev_b32 v{R.t+2}, 1, v{col}")
    e(f"v_lshl_add_u32 v{A3}, v{h}, 8, v{R.t+2}")
    e(f"v_add_u32 v{A3}, 1024, v{A3}")
    e(f"v_lshl_add_u32 v{A4}, v{h}, 8, v{R.t+2}")
    e(f"v_add_u32 v{A4}, 1024, v{A4}")
    for r in (A1, A2, A3, A4):
        e(f"v_add_u32 v{r}, s{s_lds}, v{r}")
    e("s_nop 7")
    e("s_nop 7")
    K = R.kacc
    cv = R.tmp
    for i in range(6):
        e(f"v_cvt_pk_bf16_f32 v{cv+i}, v{K+2*i}, v{K+2*i+1}")
    e(f"ds_write_b64 v{A0}, {vr(cv,2)} offset:{KP}")
    e(f"ds_write_b32 v{A1}, v{cv+2} offset:{KP}")
    e(f"ds_write_b32 v{A2}, v{cv+3} offset:{KP}")
    e(f"ds_write_b16 v{A3}, v{cv+4} offset:{KP}")
    e(f"ds_write_b16_d16_hi v{A4}, v{cv+4} offset:{KP+64}")
    e(f"ds_write_b16 v{A4}, v{cv+5} offset:{KP+128}")
    e(f"ds_write_b16_d16_hi v{A4}, v{cv+5} offset:{KP+192}")
    a.c("expansion to the reversed 2048-entry kernel")
    SW, LO, HI = st + 4, st + 5, st + 6
    e(f"s_mov_b32 s{SW}, 0x01000302")
    e(f"s_mov_b32 s{LO}, 0x01000100")
    e(f"s_mov_b32 s{HI}, 0x03020302")
    CH = R.ad + 2
    e(f"v_lshlrev_b32 v{CH}, 4, v{L}")
    e(f"v_add_u32 v{CH}, s{s_lds}, v{CH}")
    S3, S2, S1, S0, SEL = R.ad + 3, R.ad + 4, R.ad + 5, R.ad + 6, R.ad + 7
    e(f"v_lshlrev_b32 v{R.t}, 1, v{L}")
    e(f"v_sub_u32 v{S3}, {2*(639-64)}, v{R.t}")
    e(f"v_lshlrev_b32 v{R.t}, 2, v{L}")
    e(f"v_sub_u32 v{S2}, {2*(766-256)}, v{R.t}")
    e(f"v_lshlrev_b32 v{R.t}, 3, v{L}")
    e(f"v_sub_u32 v{S1}, {2*(1148-4*192)}, v{R.t}")
    e(f"v_lshlrev_b32 v{R.t}, 4, v{L}")
    e(f"v_sub_u32 v{S0}, {2*(2040-8*192)}, v{R.t}")
    e(f"v_max_i32 v{S1}, 0, v{S1}")
    e(f"v_min_i32 v{S0}, 496, v{S0}")
    for r in (S3, S2, S1, S0):
        e(f"v_add_u32 v{r}, s{s_lds}, v{r}")
    e(f"v_and_b32 v{R.t}, 1, v{L}")
    e(f"v_cmp_eq_u32 vcc, 1, v{R.t}")
    e(f"v_mov_b32 v{R.t+1}, s{LO}")
    e(f"v_mov_b32 v{R.t+2}, 0x05040100")
    e(f"v_cndmask_b32 v{SEL}, v{R.t+1}, v{R.t+2}, vcc")
    a.wait(lgkm=0)
    T = R.af
    TB = R.tmp
    e(f"ds_read_u16 v{T}, v{S3} offset:{KP+128}")
    e(f"ds_read_u16 v{TB}, v{S3} offset:{KP+130}")
    e(f"ds_read_u16 v{T+1}, v{S3} offset:{KP}")
    e(f"ds_read_u16 v{TB+1}, v{S3} offset:{KP+2}")
    e(f"ds_read_b32 v{T+2}, v{S2} offset:{KP}")
    e(f"ds_read_u16 v{T+3}, v{S2} offset:{KP+4}")
    e(f"ds_read_b64 {vr(T+4,2)}, v{S1} offset:{KP}")
    e(f"ds_read_u16 v{T+6}, v{S1} offset:{KP+8}")
    e(f"ds_read_b128 {vr(T+8,4)}, v{S0} offset:{KP}")
    O = T + 12
    a.wait(lgkm=0)
    for m in range(2):
        o = O + 4 * m
        e(f"v_perm_b32 v{o}, v{TB+m}, v{TB+m}, s{LO}")
        e(f"v_perm_b32 v{o+1}, v{T+m}, v{TB+m}, v{SEL}")
        e(f"v_perm_b32 v{o+2}, v{T+m}, v{T+m}, s{LO}")
        e(f"v_perm_b32 v{o+3}, v{T+m}, v{T+m}, s{LO}")
    o = O + 8
    e(f"v_perm_b32 v{o}, v{T+3}, v{T+3}, s{LO}")
    e(f"v_perm_b32 v{o+1}, v{T+2}, v{T+2}, s{HI}")
    e(f"v_perm_b32 v{o+2}, v{T+2}, v{T+2}, s{SW}")
    e(f"v_perm_b32 v{o+3}, v{T+2}, v{T+2}, s{LO}")
    o = O + 12
    e(f"s_mov_b32 s{st+7}, 0x03020504")
    e(f"v_perm_b32 v{o}, v{T+6}, v{T+5}, s{st+7}")
    e(f"v_perm_b32 v{o+1}, v{T+5}, v{T+5}, s{LO}")
    e(f"v_perm_b32 v{o+2}, v{T+5}, v{T+4}, s{st+7}")
    e(f"v_perm_b32 v{o+3}, v{T+4}, v{T+4}, s{LO}")
    o2 = O + 16
    for i in range(4):
        e(f"v_perm_b32 v{o2+i}, v{T+11-i}, v{T+11-i}, s{SW}")
    e(f"v_cmp_gt_u32 vcc, 32, v{L}")
    e("s_nop 1")
    for i in range(4):
        e(f"v_cndmask_b32 v{o+i}, v{o2+i}, v{o+i}, vcc")
    for i in range(4):
        e(f"v_mov_b32 v{o2+i}, 0")
    for m in range(5):
        e(f"ds_write_b128 v{CH}, {vr(O+4*m,4)} offset:{KR0 + m*1024}")
    a.wait(lgkm=0)
    for m in range(5):
        e(f"ds_read_b32 v{T+m}, v{CH} offset:{KR0 + m*1024 - 4}")
    a.wait(lgkm=0)
    for m in range(5):
        o = O + 4 * m
        e(f"v_alignbit_b32 v{T+5}, v{o}, v{T+m}, 16")
        e(f"v_alignbit_b32 v{T+6}, v{o+1}, v{o}, 16")
        e(f"v_alignbit_b32 v{T+7}, v{o+2}, v{o+1}, 16")
        e(f"v_alignbit_b32 v{T+8}, v{o+3}, v{o+2}, 16")
        e(f"v_mov_b32 v{o}, v{T+5}")
        e(f"v_mov_b32 v{o+1}, v{T+6}")
        e(f"v_mov_b32 v{o+2}, v{T+7}")
        e(f"v_mov_b32 v{o+3}, v{T+8}")
        e(f"ds_write_b128 v{CH}, {vr(o,4)} offset:{KR1 + m*1024}")
    a.c("u fragments")
    UA = R.ad + 2
    e(f"v_and_b32 v{R.t}, 15, v{L}")
    e(f"v_lshrrev_b32 v{R.t+1}, 4, v{L}")
    e(f"v_lshlrev_b32 v{UA}, 5, v{R.t}")
    e(f"v_lshl_add_u32 v{UA}, v{R.t+1}, 4, v{UA}")
    e(f"v_add_u32 v{UA}, s{s_lds}, v{UA}")
    KA = R.ad + 3
    e(f"v_lshlrev_b32 v{R.t+2}, 3, v{R.t+1}")
    e(f"v_sub_u32 v{R.t+2}, v{R.t+2}, v{R.t}")
    e(f"v_lshlrev_b32 v{R.t+2}, 1, v{R.t+2}")
    e(f"v_and_b32 v{R.t+3}, 1, v{R.t}")
    e(f"v_cmp_eq_u32 vcc, 1, v{R.t+3}")
    e(f"v_mov_b32 v{R.t+4}, {KR1 + 2*2032}")
    e(f"v_mov_b32 v{R.t+5}, {KR0 + 2*2031}")
    e(f"v_cndmask_b32 v{R.t+4}, v{R.t+4}, v{R.t+5}, vcc")
    e(f"v_add_u32 v{R.t+2}, v{R.t+2}, v{R.t+4}")
    e(f"v_add_u32 v{R.t+2}, s{s_lds}, v{R.t+2}")
    for g in range(4):
        e(f"v_subrev_u32 v{KA+g}, {64*(16*g+15)}, v{R.t+2}")
    a.wait(vm=a.vm_n(useq), lgkm=0)
    for m in range(64):
        e(f"ds_read_b128 {ar(4*m,4)}, v{UA} offset:{UB + 64*m}")
        if m % 8 == 7 and m < 63:
            a.wait(lgkm=7)

    a.c("Toeplitz convolution")
    NB = 8

    def aread(ee):
        r = R.af + 4 * (ee % NB)
        g = ee // 16
        o = 16 * (16 * g + 15 - ee)
        return [f"ds_read2_b32 {vr(r,2)}, v{KA+g} offset0:{o} offset1:{o+1}",
                f"ds_read2_b32 {vr(r+2,2)}, v{KA+g} offset0:{o+2} offset1:{o+3}"]
    PRE = 3
    for ee in range(PRE):
        for x in aread(ee):
            e(x)
    for ee in range(64):
        if ee + PRE < 64:
            pend = aread(ee + PRE)
            a.wait(lgkm=2 * (PRE - 1))
        else:
            pend = []
            a.wait(lgkm=max(0, 2 * (63 - ee)))
        jmin = max(0, -(-(ee - 7) // 8))
        k = 0
        for j in range(jmin, 8):
            c = R.acc + 4 * j
            cin = "0" if ee == 0 else vr(c, 4)
            m = 8 * j - ee + 7
            e(f"v_mfma_f32_16x16x32_bf16 {vr(c,4)}, {vr(R.af + 4*(ee % NB),4)}, {ar(4*m,4)}, {cin}")
            if pend and k == 0:
                for x in pend:
                    e(x)
                pend = []
            k += 1
    e(f"v_and_b32 v{R.t}, 15, v{L}")
    e(f"v_lshrrev_b32 v{R.t+1}, 4, v{L}")
    e(f"v_lshlrev_b32 v{R.t+2}, 5, v{R.t}")
    e(f"v_lshl_add_u32 v{R.t+2}, v{R.t+1}, 3, v{R.t+2}")
    e(f"s_lshl_b32 s{st}, s{s_ch}, 12")
    e(f"s_add_u32 s{st}, s{st}, {WS_YT}")
    e("s_nop 4")
    for j in range(8):
        c = R.acc + 4 * j
        o = R.tmp + 2 * (j % 4)
        e(f"v_cvt_pk_bf16_f32 v{o}, v{c}, v{c+1}")
        e(f"v_cvt_pk_bf16_f32 v{o+1}, v{c+2}, v{c+3}")
        a.vmem(f"buffer_store_dwordx2 {vr(o,2)}, v{R.t+2}, s[{srd_ws}:{srd_ws+3}], s{st} offen offset:{512*j}{publish_sc}")


K2_LDS = 4 * WAVE_LDS


def gen_k2(name):
    a = Asm()
    e = a.e
    R = S4Regs()
    e("s_cmp_ge_u32 s2, 144")
    e("s_cbranch_scc1 K2_END")
    e("s_load_dwordx4 s[44:47], s[0:1], 8")
    e("s_load_dwordx4 s[48:51], s[0:1], 24")
    e("s_load_dwordx2 s[52:53], s[0:1], 40")
    e("s_load_dwordx2 s[54:55], s[0:1], 96")
    e(f"v_and_b32 v{R.lane}, 63, v0")
    e("v_lshrrev_b32 v2, 6, v0")
    e("s_lshl_b32 s29, s2, 2")
    e("s_nop 0")
    e("v_readfirstlane_b32 s28, v2")
    e("s_nop 3")
    e("s_add_u32 s29, s29, s28")
    e(f"s_mul_i32 s30, s28, {WAVE_LDS}")
    e("s_waitcnt lgkmcnt(0)")
    srd = {"la": 4, "ai": 8, "cr": 12, "ci": 16, "ldt": 20}
    for nm, lo, size in (("la", 44, 147456), ("ai", 46, 147456), ("cr", 48, 147456), ("ci", 50, 147456), ("ldt", 52, 1152)):
        S = srd[nm]
        e(f"s_mov_b32 s{S}, s{lo}")
        e(f"s_mov_b32 s{S+1}, s{lo+1}")
        e(f"s_mov_b32 s{S+2}, {size}")
        e(f"s_mov_b32 s{S+3}, 0x20000")
    e("s_mov_b32 s24, s54")
    e("s_mov_b32 s25, s55")
    e("s_mov_b32 s26, 0x1800000")
    e("s_mov_b32 s27, 0x20000")
    gen_s4_body(a, R, 29, 30, srd, 24, 32)
    a.label("K2_END")
    e("s_endpgm")
    return kernel_head(name) + a.text() + "\n" + kernel_desc(name, 512, 256)
```

```python
from build import *
import k1, s4, fin, sys
names = ("ffn_kernel", "s4_kernel", "fin_kernel")
L = [(names[0], 256, 256, k1.K1_LDS), (names[1], 144, 256, s4.K2_LDS), (names[2], 576, 256, 0)]
t = assemble(L, [k1.gen_k1(names[0]), s4.gen_k2(names[1]), fin.gen_k3(names[2])], "v1.s")
to_co("v1.s", "v1.co")
```

```python
from asmgen import *
from k1 import WS_STATS, WS_YT, WS_PART, WS_SIZE


def unpack2(e, lo, hi, src):
    e(f"v_lshlrev_b32 v{lo}, 16, v{src}")
    e(f"v_and_b32 v{hi}, 0xffff0000, v{src}")


def round_pair(e, a0, a1, tmp):
    e(f"v_cvt_pk_bf16_f32 v{tmp}, v{a0}, v{a1}")
    unpack2(e, a0, a1, tmp)


def final_math(e, P, X, Y, D, M, RS, s_nl2e, T, OUT):
    O, G, XF, S = T, T + 8, T + 16, T + 24
    t0, t1 = T + 32, T + 33
    for k in range(4):
        unpack2(e, O + 2 * k, O + 2 * k + 1, P + k)
    for j in range(1, 8):
        for k in range(4):
            unpack2(e, G + 2 * k, G + 2 * k + 1, P + 4 * j + k)
        for k in range(4):
            e(f"v_pk_add_f32 {vr(O+2*k,2)}, {vr(O+2*k,2)}, {vr(G+2*k,2)}")
    for k in range(4):
        round_pair(e, O + 2 * k, O + 2 * k + 1, t0)
    for k in range(8):
        e(f"v_mul_f32 v{G+k}, s{s_nl2e}, v{O+k}")
    for k in range(8):
        e(f"v_exp_f32 v{G+k}, v{G+k}")
    for k in range(8):
        e(f"v_add_f32 v{G+k}, 1.0, v{G+k}")
    for k in range(8):
        e(f"v_rcp_f32 v{G+k}, v{G+k}")
    e("s_nop 0")
    for k in range(8):
        e(f"v_mul_f32 v{G+k}, v{G+k}, v{O+k}")
    for k in range(4):
        round_pair(e, G + 2 * k, G + 2 * k + 1, t0)
    for k in range(4):
        unpack2(e, XF + 2 * k, XF + 2 * k + 1, X + k)
    for k in range(8):
        e(f"v_sub_f32 v{S+k}, v{XF+k}, v{M}")
    for k in range(8):
        e(f"v_mul_f32 v{S+k}, v{S+k}, v{RS}")
    for k in range(4):
        round_pair(e, S + 2 * k, S + 2 * k + 1, t0)
    for k in range(4):
        unpack2(e, O + 2 * k, O + 2 * k + 1, D + k)
    for k in range(8):
        e(f"v_mul_f32 v{S+k}, v{S+k}, v{O+k}")
    for k in range(4):
        round_pair(e, S + 2 * k, S + 2 * k + 1, t0)
    for k in range(8):
        e(f"v_lshlrev_b32 v{O+k}, 16, v{Y+k}")
    for k in range(8):
        e(f"v_add_f32 v{S+k}, v{S+k}, v{O+k}")
    for k in range(4):
        round_pair(e, S + 2 * k, S + 2 * k + 1, t0)
    for k in range(8):
        e(f"v_mul_f32 v{S+k}, v{S+k}, v{G+k}")
    for k in range(4):
        round_pair(e, S + 2 * k, S + 2 * k + 1, t0)
    for k in range(8):
        e(f"v_add_f32 v{S+k}, v{S+k}, v{XF+k}")
    for k in range(4):
        e(f"v_cvt_pk_bf16_f32 v{OUT+k}, v{S+2*k}, v{S+2*k+1}")


def gen_k3(name, dbg=False):
    a = Asm()
    e = a.e
    e("s_cmp_ge_u32 s2, 576")
    e("s_cbranch_scc1 K3_END")
    if dbg:
        e("s_memrealtime s[60:61]")
    e("s_load_dwordx2 s[44:45], s[0:1], 0")
    e("s_load_dwordx2 s[46:47], s[0:1], 48")
    e("s_load_dwordx2 s[48:49], s[0:1], 80")
    e("s_load_dwordx2 s[50:51], s[0:1], 96")
    e("v_and_b32 v1, 63, v0")
    e("v_lshrrev_b32 v2, 6, v0")
    e("s_lshl_b32 s20, s2, 2")
    e("v_and_b32 v3, 15, v1")
    e("v_readfirstlane_b32 s21, v2")
    e("v_lshrrev_b32 v4, 4, v1")
    e("s_nop 2")
    e("s_add_u32 s20, s20, s21")
    e("s_mul_hi_u32 s22, s20, 59652324")
    e("s_mul_i32 s23, s22, 72")
    e("s_sub_u32 s23, s20, s23")
    e("s_lshr_b32 s24, s23, 2")
    e("s_and_b32 s25, s23, 3")
    e("s_lshl_b32 s26, s22, 6")
    e("s_lshl_b32 s27, s25, 4")
    e("s_add_u32 s26, s26, s27")
    e("s_lshl_b32 s27, s24, 5")
    e("v_add_u32 v5, s26, v3")
    e("v_lshl_add_u32 v6, v4, 2, s27")
    e("s_waitcnt lgkmcnt(0)")
    for S, lo, size in ((4, 44, 2359296), (8, 46, 1152), (12, 48, 2359296), (16, 50, WS_SIZE)):
        e(f"s_mov_b32 s{S}, s{lo}")
        e(f"s_mov_b32 s{S+1}, s{lo+1}")
        e(f"s_mov_b32 s{S+2}, {size}")
        e(f"s_mov_b32 s{S+3}, 0x20000")
    P, X, Y, D, ST = 16, 48, 104, 56, 60
    e("v_lshlrev_b32 v7, 4, v1")
    e("s_lshl_b32 s28, s20, 13")
    e(f"s_add_u32 s28, s28, {WS_PART}")
    e("s_add_u32 s29, s28, 4096")
    for j in range(8):
        a.vmem(f"buffer_load_dwordx4 {vr(P+4*j,4)}, v7, s[16:19], s{28 + j//4} offen offset:{(j % 4)*1024}")
    e("v_mul_u32_u24 v8, 1152, v5")
    e("v_lshl_add_u32 v8, v6, 1, v8")
    a.vmem(f"buffer_load_dwordx2 {vr(X,2)}, v8, s[4:7], 0 offen")
    a.vmem(f"buffer_load_dwordx2 {vr(X+2,2)}, v8, s[4:7], 0 offen offset:32")
    e("v_lshlrev_b32 v9, 1, v6")
    a.vmem(f"buffer_load_dwordx2 {vr(D,2)}, v9, s[8:11], 0 offen")
    a.vmem(f"buffer_load_dwordx2 {vr(D+2,2)}, v9, s[8:11], 0 offen offset:32")
    e("v_lshlrev_b32 v10, 3, v5")
    e(f"v_add_u32 v10, {WS_STATS}, v10")
    a.vmem(f"buffer_load_dwordx2 {vr(ST,2)}, v10, s[16:19], 0 offen")
    e("v_lshlrev_b32 v11, 12, v6")
    e("v_lshl_add_u32 v11, v5, 1, v11")
    for k in range(8):
        dd = (k % 4) + 16 * (k // 4)
        e(f"s_mov_b32 s{30+k}, {WS_YT + dd*4096}")
    for k in range(8):
        a.vmem(f"buffer_load_ushort v{Y + k}, v11, s[16:19], s{30+k} offen")
    e("s_mov_b32 s40, 0xbfb8aa3b")
    a.wait(vm=0)
    if dbg:
        e("s_memrealtime s[62:63]")
    final_math(e, P, X, Y, D, ST, ST + 1, 40, 64, 12)
    a.vmem(f"buffer_store_dwordx2 {vr(12,2)}, v8, s[12:15], 0 offen")
    a.vmem(f"buffer_store_dwordx2 {vr(14,2)}, v8, s[12:15], 0 offen offset:32")
    if dbg:
        from s4 import simple_stamps
        simple_stamps(a, 2, 0x1760000, 1, 16, 21)
    a.label("K3_END")
    e("s_endpgm")
    return kernel_head(name) + a.text() + "\n" + kernel_desc(name, 112, 112, 102 if dbg else 64)
```

```python
from asmgen import *
import struct

WS_UT = 0
WS_YT = 0x250000

def fbits(x):
    return struct.unpack('<I', struct.pack('<f', x))[0]

TAB = 0
TAB_PITCH = 272
KP = 14464
KR0 = 16000
KR1 = KR0 + 5120 + 64
UB = KR1 + 5120
WAVE_LDS = 31232
assert UB + 4576 <= WAVE_LDS

ROWS = list(range(8)) + [256, 258, 260, 262, 512, 516, 768, 772, 1024, 1280, 1536, 1792, 2048]


class S4Regs:
    def __init__(self):
        self.lane = 1
        self.t = 2
        self.base = 10
        self.raw = 12
        self.dt = 21
        self.zr, self.zi = 22, 23
        self.w1, self.w2, self.w4, self.w8, self.w16, self.w256 = 24, 26, 28, 30, 32, 34
        self.x = 36
        self.e0, self.e1 = 40, 42
        self.tmp = 44
        self.cv = 52
        self.fa, self.fb = 56, 60
        self.kacc = 72
        self.acc = 96
        self.af = 128
        self.ad = 160


def cmul(a, d, x, w, t):
    return [f"v_pk_mul_f32 {vr(t,2)}, {vr(x,2)}, {vr(w,2)} op_sel:[0,0] op_sel_hi:[1,0]",
            f"v_pk_fma_f32 {vr(d,2)}, {vr(x,2)}, {vr(w,2)}, {vr(t,2)} op_sel:[1,1,0] op_sel_hi:[0,1,1] neg_lo:[1,0,0]"]


def gen_s4_body(a, R, s_ch, s_lds, srd_par, srd_ws, s_tmp, publish_sc="", dbg=False):
    e = a.e
    L = R.lane
    st = s_tmp
    e(f"s_lshl_b32 s{st}, s{s_ch}, 8")
    e(f"v_lshlrev_b32 v{R.t}, 1, v{L}")
    ld = []
    k = 0
    for nm in ("la", "ai", "cr", "ci"):
        for p in range(2):
            ld.append(a.vmem(f"buffer_load_ushort v{R.raw+k}, v{R.t}, s[{srd_par[nm]}:{srd_par[nm]+3}], s{st} offen offset:{128*p}"))
            k += 1
    e(f"s_lshl_b32 s{st+1}, s{s_ch}, 1")
    e(f"v_mov_b32 v{R.t+1}, 0")
    ld.append(a.vmem(f"buffer_load_ushort v{R.raw+8}, v{R.t+1}, s[{srd_par['ldt']}:{srd_par['ldt']+3}], s{st+1} offen"))
    e(f"s_lshl_b32 s{st+2}, s{s_ch}, 12")
    e(f"s_add_u32 s{st+2}, s{st+2}, {WS_UT}")
    e(f"v_lshlrev_b32 v{R.t+2}, 4, v{L}")
    e(f"s_add_u32 m0, s{s_lds}, {UB+480}")
    e("s_nop 0")
    useq = None
    for kq in range(4):
        off = f" offset:{kq*1024}" if kq else ""
        useq = a.vmem(f"buffer_load_dwordx4 v{R.t+2}, s[{srd_ws}:{srd_ws+3}], s{st+2} offen{off}{publish_sc} lds")
    for i in range(4):
        e(f"v_mov_b32 v{R.tmp+i}, 0")
    e(f"v_add_u32 v{R.t+3}, s{s_lds}, v{R.t+2}")
    e(f"v_cmp_gt_u32 vcc, 30, v{L}")
    e("s_nop 1")
    e(f"s_and_saveexec_b64 s[{st+4}:{st+5}], vcc")
    e(f"ds_write_b128 v{R.t+3}, {vr(R.tmp,4)} offset:{UB}")
    e(f"s_mov_b64 exec, s[{st+4}:{st+5}]")
    e(f"v_lshlrev_b32 v{R.base}, 2, v{L}")
    e(f"v_add_u32 v{R.base}, s{s_lds}, v{R.base}")
    e(f"v_and_b32 v{R.t}, 31, v{L}")
    e(f"v_lshrrev_b32 v{R.t+1}, 5, v{L}")
    e(f"v_mul_u32_u24 v{R.t+4}, {TAB_PITCH}, v{R.t}")
    e(f"v_lshl_add_u32 v{R.t+4}, v{R.t+1}, 4, v{R.t+4}")
    e(f"v_add_u32 v{R.ad}, s{s_lds}, v{R.t+4}")
    e(f"v_add_u32 v{R.ad+1}, {21*TAB_PITCH}, v{R.ad}")
    LOG2E = fbits(1.4426950408889634)
    e(f"s_mov_b32 s{st+3}, {LOG2E:#x}")
    a.wait(vm=a.vm_n(ld[8]))
    e(f"v_lshlrev_b32 v{R.dt}, 16, v{R.raw+8}")
    e(f"v_mul_f32 v{R.dt}, s{st+3}, v{R.dt}")
    e(f"v_exp_f32 v{R.dt}, v{R.dt}")
    e("s_nop 0")
    e(f"v_cvt_pk_bf16_f32 v{R.dt}, v{R.dt}, v{R.dt}")
    e(f"v_lshlrev_b32 v{R.dt}, 16, v{R.dt}")
    INV2PI = fbits(0.15915494309189535)
    if dbg:
        e("s_memrealtime s[62:63]")

    def wdirect(d, p):
        t = R.t
        out = [f"v_mul_f32 v{t}, {float(p)!r}, v{R.zr}" if p != 1 else f"v_mov_b32 v{t}, v{R.zr}",
               f"v_mul_f32 v{t+1}, {float(p)!r}, v{R.zi}" if p != 1 else f"v_mov_b32 v{t+1}, v{R.zi}",
               f"v_exp_f32 v{t}, v{t}",
               f"v_fract_f32 v{t+1}, v{t+1}",
               f"s_nop 0",
               f"v_cos_f32 v{d}, v{t+1}",
               f"v_sin_f32 v{d+1}, v{t+1}",
               f"s_nop 0",
               f"v_mul_f32 v{d}, v{d}, v{t}",
               f"v_mul_f32 v{d+1}, v{d+1}, v{t}"]
        return [x.replace("8.0,", f"{fbits(8.0):#x},").replace("256.0,", f"{fbits(256.0):#x},") for x in out]

    for p in range(2):
        la, ai, cr, ci = R.raw + p, R.raw + 2 + p, R.raw + 4 + p, R.raw + 6 + p
        a.c(f"kernel tables, modes {64*p}..{64*p+63}")
        e(f"v_lshlrev_b32 v{R.t}, 16, v{la}")
        e(f"v_mul_f32 v{R.t}, s{st+3}, v{R.t}")
        e(f"v_exp_f32 v{R.t}, v{R.t}")
        e(f"v_lshlrev_b32 v{R.t+1}, 16, v{ai}")
        e(f"v_cvt_pk_bf16_f32 v{R.t}, v{R.t}, v{R.t}")
        e(f"v_lshlrev_b32 v{R.t}, 16, v{R.t}")
        e(f"v_mul_f32 v{R.zr}, -v{R.t}, v{R.dt}")
        e(f"v_mul_f32 v{R.zi}, v{R.t+1}, v{R.dt}")
        e(f"v_mul_f32 v{R.zr}, s{st+3}, v{R.zr}")
        e(f"v_mul_f32 v{R.zi}, {INV2PI:#x}, v{R.zi}")
        e(f"v_lshlrev_b32 v{R.x}, 16, v{cr}")
        e(f"v_lshlrev_b32 v{R.x+1}, 16, v{ci}")
        e(f"v_mul_f32 v{R.x}, v{R.x}, v{R.dt}")
        e(f"v_mul_f32 v{R.x+1}, v{R.x+1}, v{R.dt}")
        e(f"v_add_f32 v{R.x}, v{R.x}, v{R.x}")
        e(f"v_add_f32 v{R.x+1}, v{R.x+1}, v{R.x+1}")
        for d, pw in ((R.w1, 1), (R.w8, 8), (R.w256, 256)):
            for x in wdirect(d, pw):
                e(x)
        for x in cmul(a, R.w2, R.w1, R.w1, R.tmp) + cmul(a, R.w16, R.w8, R.w8, R.tmp + 2) + cmul(a, R.w4, R.w2, R.w2, R.tmp):
            e(x)
        if p == 1:
            a.wait(lgkm=0)
        ncv = [0]

        def put(row, reg, neg):
            c = R.cv + (ncv[0] % 4)
            ncv[0] += 1
            n = "-" if neg else ""
            return [f"v_cvt_pk_bf16_f32 v{c}, v{reg}, {n}v{reg+1}",
                    f"ds_write_b32 v{R.base}, v{c} offset:{TAB + row*TAB_PITCH}"]

        XA, XB = R.x, R.x + 2
        xs = []
        xs.append(put(0, XA, False))
        xs.append(cmul(a, XB, XA, R.w256, R.tmp + 4))
        for r in range(1, 8):
            xs.append(cmul(a, XA, XA, R.w1, R.tmp + 6) + put(r, XA, False))
        xs.append(put(8, XB, False))
        xs.append(cmul(a, XA, XB, R.w2, R.tmp + 6) + put(9, XA, False))
        xs.append(cmul(a, XB, XB, R.w256, R.tmp + 4))
        xs.append(cmul(a, XA, XA, R.w2, R.tmp + 6) + put(10, XA, False))
        xs.append(cmul(a, XA, XA, R.w2, R.tmp + 6) + put(11, XA, False))
        xs.append(put(12, XB, False))
        xs.append(cmul(a, XA, XB, R.w4, R.tmp + 6) + put(13, XA, False))
        xs.append(cmul(a, XB, XB, R.w256, R.tmp + 4) + put(14, XB, False))
        xs.append(cmul(a, XA, XB, R.w4, R.tmp + 6) + put(15, XA, False))
        for r in range(16, 21):
            xs.append(cmul(a, XB, XB, R.w256, R.tmp + 4) + put(r, XB, False))
        es = []
        es.append([f"v_mov_b32 v{R.e0}, 1.0", f"v_mov_b32 v{R.e0+1}, 0", f"v_mov_b32 v{R.e1}, v{R.w8}", f"v_mov_b32 v{R.e1+1}, v{R.w8+1}"]
                  + put(21, R.e0, True) + put(22, R.e1, True))
        for c in range(2, 32, 2):
            m0 = cmul(a, R.e0, R.e0, R.w16, R.tmp)
            m1 = cmul(a, R.e1, R.e1, R.w16, R.tmp + 2)
            es.append([m0[0], m1[0], m0[1], m1[1]] + put(21 + c, R.e0, True) + put(22 + c, R.e1, True))
        n = max(len(xs), len(es))
        for i in range(n):
            if i < len(es):
                for x in es[i]:
                    e(x)
            if i < len(xs):
                for x in xs[i]:
                    e(x)
        for i in range(len(xs), n):
            pass
        a.wait(lgkm=0)
        for s in range(8):
            fa, fb = R.fa + 8 * (s % 2), R.fb + 8 * (s % 2)
            if s == 0:
                e(f"ds_read_b128 {vr(fa,4)}, v{R.ad} offset:{TAB}")
                e(f"ds_read_b128 {vr(fb,4)}, v{R.ad+1} offset:{TAB}")
            if s + 1 < 8:
                fa2, fb2 = R.fa + 8 * ((s + 1) % 2), R.fb + 8 * ((s + 1) % 2)
                e(f"ds_read_b128 {vr(fa2,4)}, v{R.ad} offset:{TAB + (s+1)*32}")
                e(f"ds_read_b128 {vr(fb2,4)}, v{R.ad+1} offset:{TAB + (s+1)*32}")
                a.wait(lgkm=2)
            else:
                a.wait(lgkm=0)
            cin = "0" if (p == 0 and s == 0) else vr(R.kacc, 16)
            e(f"v_mfma_f32_32x32x16_bf16 {vr(R.kacc,16)}, {vr(fa,4)}, {vr(fb,4)}, {cin}")
    if dbg:
        e("s_memrealtime s[64:65]")
    a.c("compact kernel table")
    col, h = R.t, R.t + 1
    e(f"v_and_b32 v{col}, 31, v{L}")
    e(f"v_lshrrev_b32 v{h}, 5, v{L}")
    A0, A1, A2, A3, A4 = R.ad + 2, R.ad + 3, R.ad + 4, R.ad + 5, R.ad + 6
    e(f"v_lshlrev_b32 v{A0}, 4, v{col}")
    e(f"v_lshl_add_u32 v{A0}, v{h}, 3, v{A0}")
    e(f"v_add_u32 v{A0}, s{s_lds}, v{A0}")
    e(f"v_cmp_eq_u32 vcc, 0, v{h}")
    e(f"v_lshlrev_b32 v{R.t+2}, 3, v{col}")
    e(f"v_lshlrev_b32 v{R.t+3}, 2, v{col}")
    e(f"v_add_u32 v{R.t+4}, 512, v{R.t+2}")
    e(f"v_add_u32 v{R.t+5}, 768, v{R.t+3}")
    e(f"v_cndmask_b32 v{A1}, v{R.t+5}, v{R.t+4}, vcc")
    e(f"v_add_u32 v{R.t+4}, 516, v{R.t+2}")
    e(f"v_add_u32 v{R.t+5}, 896, v{R.t+3}")
    e(f"v_cndmask_b32 v{A2}, v{R.t+5}, v{R.t+4}, vcc")
    e(f"v_lshlrev_b32 v{R.t+2}, 1, v{col}")
    e(f"v_lshl_add_u32 v{A3}, v{h}, 8, v{R.t+2}")
    e(f"v_add_u32 v{A3}, 1024, v{A3}")
    e(f"v_lshl_add_u32 v{A4}, v{h}, 8, v{R.t+2}")
    e(f"v_add_u32 v{A4}, 1024, v{A4}")
    for r in (A1, A2, A3, A4):
        e(f"v_add_u32 v{r}, s{s_lds}, v{r}")
    e("s_nop 7")
    e("s_nop 7")
    K = R.kacc
    cv = R.tmp
    for i in range(6):
        e(f"v_cvt_pk_bf16_f32 v{cv+i}, v{K+2*i}, v{K+2*i+1}")
    e(f"ds_write_b64 v{A0}, {vr(cv,2)} offset:{KP}")
    e(f"ds_write_b32 v{A1}, v{cv+2} offset:{KP}")
    e(f"ds_write_b32 v{A2}, v{cv+3} offset:{KP}")
    e(f"ds_write_b16 v{A3}, v{cv+4} offset:{KP}")
    e(f"ds_write_b16_d16_hi v{A4}, v{cv+4} offset:{KP+64}")
    e(f"ds_write_b16 v{A4}, v{cv+5} offset:{KP+128}")
    e(f"ds_write_b16_d16_hi v{A4}, v{cv+5} offset:{KP+192}")
    a.c("expansion to the reversed 2048-entry kernel")
    SW, LO, HI = st + 4, st + 5, st + 6
    e(f"s_mov_b32 s{SW}, 0x01000302")
    e(f"s_mov_b32 s{LO}, 0x01000100")
    e(f"s_mov_b32 s{HI}, 0x03020302")
    CH = R.ad + 2
    e(f"v_lshlrev_b32 v{CH}, 4, v{L}")
    e(f"v_add_u32 v{CH}, s{s_lds}, v{CH}")
    S3, S2, S1, S0, SEL = R.ad + 3, R.ad + 4, R.ad + 5, R.ad + 6, R.ad + 7
    e(f"v_lshlrev_b32 v{R.t}, 1, v{L}")
    e(f"v_sub_u32 v{S3}, {2*(639-64)}, v{R.t}")
    e(f"v_lshlrev_b32 v{R.t}, 2, v{L}")
    e(f"v_sub_u32 v{S2}, {2*(766-256)}, v{R.t}")
    e(f"v_lshlrev_b32 v{R.t}, 3, v{L}")
    e(f"v_sub_u32 v{S1}, {2*(1148-4*192)}, v{R.t}")
    e(f"v_lshlrev_b32 v{R.t}, 4, v{L}")
    e(f"v_sub_u32 v{S0}, {2*(2040-8*192)}, v{R.t}")
    e(f"v_max_i32 v{S1}, 0, v{S1}")
    e(f"v_min_i32 v{S0}, 496, v{S0}")
    for r in (S3, S2, S1, S0):
        e(f"v_add_u32 v{r}, s{s_lds}, v{r}")
    e(f"v_and_b32 v{R.t}, 1, v{L}")
    e(f"v_cmp_eq_u32 vcc, 1, v{R.t}")
    e(f"v_mov_b32 v{R.t+1}, s{LO}")
    e(f"v_mov_b32 v{R.t+2}, 0x05040100")
    e(f"v_cndmask_b32 v{SEL}, v{R.t+1}, v{R.t+2}, vcc")
    a.wait(lgkm=0)
    T = R.af
    TB = R.tmp
    e(f"ds_read_u16 v{T}, v{S3} offset:{KP+128}")
    e(f"ds_read_u16 v{TB}, v{S3} offset:{KP+130}")
    e(f"ds_read_u16 v{T+1}, v{S3} offset:{KP}")
    e(f"ds_read_u16 v{TB+1}, v{S3} offset:{KP+2}")
    e(f"ds_read_b32 v{T+2}, v{S2} offset:{KP}")
    e(f"ds_read_u16 v{T+3}, v{S2} offset:{KP+4}")
    e(f"ds_read_b64 {vr(T+4,2)}, v{S1} offset:{KP}")
    e(f"ds_read_u16 v{T+6}, v{S1} offset:{KP+8}")
    e(f"ds_read_b128 {vr(T+8,4)}, v{S0} offset:{KP}")
    O = T + 12
    a.wait(lgkm=0)
    for m in range(2):
        o = O + 4 * m
        e(f"v_perm_b32 v{o}, v{TB+m}, v{TB+m}, s{LO}")
        e(f"v_perm_b32 v{o+1}, v{T+m}, v{TB+m}, v{SEL}")
        e(f"v_perm_b32 v{o+2}, v{T+m}, v{T+m}, s{LO}")
        e(f"v_perm_b32 v{o+3}, v{T+m}, v{T+m}, s{LO}")
    o = O + 8
    e(f"v_perm_b32 v{o}, v{T+3}, v{T+3}, s{LO}")
    e(f"v_perm_b32 v{o+1}, v{T+2}, v{T+2}, s{HI}")
    e(f"v_perm_b32 v{o+2}, v{T+2}, v{T+2}, s{SW}")
    e(f"v_perm_b32 v{o+3}, v{T+2}, v{T+2}, s{LO}")
    o = O + 12
    e(f"s_mov_b32 s{st+7}, 0x03020504")
    e(f"v_perm_b32 v{o}, v{T+6}, v{T+5}, s{st+7}")
    e(f"v_perm_b32 v{o+1}, v{T+5}, v{T+5}, s{LO}")
    e(f"v_perm_b32 v{o+2}, v{T+5}, v{T+4}, s{st+7}")
    e(f"v_perm_b32 v{o+3}, v{T+4}, v{T+4}, s{LO}")
    o2 = O + 16
    for i in range(4):
        e(f"v_perm_b32 v{o2+i}, v{T+11-i}, v{T+11-i}, s{SW}")
    e(f"v_cmp_gt_u32 vcc, 32, v{L}")
    e("s_nop 1")
    for i in range(4):
        e(f"v_cndmask_b32 v{o+i}, v{o2+i}, v{o+i}, vcc")
    for i in range(4):
        e(f"v_mov_b32 v{o2+i}, 0")
    for m in range(5):
        e(f"ds_write_b128 v{CH}, {vr(O+4*m,4)} offset:{KR0 + m*1024}")
    a.wait(lgkm=0)
    for m in range(5):
        e(f"ds_read_b32 v{T+m}, v{CH} offset:{KR0 + m*1024 - 4}")
    a.wait(lgkm=0)
    for m in range(5):
        o = O + 4 * m
        e(f"v_alignbit_b32 v{T+5}, v{o}, v{T+m}, 16")
        e(f"v_alignbit_b32 v{T+6}, v{o+1}, v{o}, 16")
        e(f"v_alignbit_b32 v{T+7}, v{o+2}, v{o+1}, 16")
        e(f"v_alignbit_b32 v{T+8}, v{o+3}, v{o+2}, 16")
        e(f"v_mov_b32 v{o}, v{T+5}")
        e(f"v_mov_b32 v{o+1}, v{T+6}")
        e(f"v_mov_b32 v{o+2}, v{T+7}")
        e(f"v_mov_b32 v{o+3}, v{T+8}")
        e(f"ds_write_b128 v{CH}, {vr(o,4)} offset:{KR1 + m*1024}")
    a.c("u fragments")
    UA = R.ad + 2
    e(f"v_and_b32 v{R.t}, 15, v{L}")
    e(f"v_lshrrev_b32 v{R.t+1}, 4, v{L}")
    e(f"v_lshlrev_b32 v{UA}, 5, v{R.t}")
    e(f"v_lshl_add_u32 v{UA}, v{R.t+1}, 4, v{UA}")
    e(f"v_add_u32 v{UA}, s{s_lds}, v{UA}")
    KA = R.ad + 3
    e(f"v_lshlrev_b32 v{R.t+2}, 3, v{R.t+1}")
    e(f"v_sub_u32 v{R.t+2}, v{R.t+2}, v{R.t}")
    e(f"v_lshlrev_b32 v{R.t+2}, 1, v{R.t+2}")
    e(f"v_and_b32 v{R.t+3}, 1, v{R.t}")
    e(f"v_cmp_eq_u32 vcc, 1, v{R.t+3}")
    e(f"v_mov_b32 v{R.t+4}, {KR1 + 2*2032}")
    e(f"v_mov_b32 v{R.t+5}, {KR0 + 2*2031}")
    e(f"v_cndmask_b32 v{R.t+4}, v{R.t+4}, v{R.t+5}, vcc")
    e(f"v_add_u32 v{R.t+2}, v{R.t+2}, v{R.t+4}")
    e(f"v_add_u32 v{R.t+2}, s{s_lds}, v{R.t+2}")
    for g in range(4):
        e(f"v_subrev_u32 v{KA+g}, {64*(16*g+15)}, v{R.t+2}")
    a.wait(vm=a.vm_n(useq), lgkm=0)
    for m in range(64):
        e(f"ds_read_b128 {ar(4*m,4)}, v{UA} offset:{UB + 64*m}")
        if m % 8 == 7 and m < 63:
            a.wait(lgkm=7)

    if dbg:
        e("s_memrealtime s[66:67]")
    a.c("Toeplitz convolution")
    NB = 8

    def aread(ee):
        r = R.af + 4 * (ee % NB)
        g = ee // 16
        o = 16 * (16 * g + 15 - ee)
        return [f"ds_read2_b32 {vr(r,2)}, v{KA+g} offset0:{o} offset1:{o+1}",
                f"ds_read2_b32 {vr(r+2,2)}, v{KA+g} offset0:{o+2} offset1:{o+3}"]
    PRE = 3
    for ee in range(PRE):
        for x in aread(ee):
            e(x)
    for ee in range(64):
        if ee + PRE < 64:
            pend = aread(ee + PRE)
            a.wait(lgkm=2 * (PRE - 1))
        else:
            pend = []
            a.wait(lgkm=max(0, 2 * (63 - ee)))
        jmin = max(0, -(-(ee - 7) // 8))
        k = 0
        for j in range(jmin, 8):
            c = R.acc + 4 * j
            cin = "0" if ee == 0 else vr(c, 4)
            m = 8 * j - ee + 7
            e(f"v_mfma_f32_16x16x32_bf16 {vr(c,4)}, {vr(R.af + 4*(ee % NB),4)}, {ar(4*m,4)}, {cin}")
            if pend and k == 0:
                for x in pend:
                    e(x)
                pend = []
            k += 1
    if dbg:
        e("s_memrealtime s[68:69]")
    e(f"v_and_b32 v{R.t}, 15, v{L}")
    e(f"v_lshrrev_b32 v{R.t+1}, 4, v{L}")
    e(f"v_lshlrev_b32 v{R.t+2}, 5, v{R.t}")
    e(f"v_lshl_add_u32 v{R.t+2}, v{R.t+1}, 3, v{R.t+2}")
    e(f"s_lshl_b32 s{st}, s{s_ch}, 12")
    e(f"s_add_u32 s{st}, s{st}, {WS_YT}")
    e("s_nop 4")
    for j in range(8):
        c = R.acc + 4 * j
        o = R.tmp + 2 * (j % 4)
        e(f"v_cvt_pk_bf16_f32 v{o}, v{c}, v{c+1}")
        e(f"v_cvt_pk_bf16_f32 v{o+1}, v{c+2}, v{c+3}")
        a.vmem(f"buffer_store_dwordx2 {vr(o,2)}, v{R.t+2}, s[{srd_ws}:{srd_ws+3}], s{st} offen offset:{512*j}{publish_sc}")


K2_LDS = 4 * WAVE_LDS


def simple_stamps(a, idx, area, lane, srd, wavesgpr):
    e = a.e
    e("s_waitcnt vmcnt(0) lgkmcnt(0)")
    e("s_memrealtime s[78:79]")
    e("s_waitcnt lgkmcnt(0)")
    e("v_mov_b32 v2, 0")
    for i in range(idx):
        e(f"v_writelane_b32 v2, s{60+2*i}, {i}")
    e(f"v_writelane_b32 v2, s78, {idx}")
    e(f"s_lshl_b32 s44, s2, 2")
    e(f"s_add_u32 s44, s44, s{wavesgpr}")
    e(f"s_lshl_b32 s44, s44, 6")
    e(f"s_add_u32 s44, s44, {area}")
    e(f"v_lshlrev_b32 v3, 2, v{lane}")
    e(f"v_cmp_gt_u32 vcc, 16, v{lane}")
    e("s_nop 4")
    e("s_and_saveexec_b64 s[46:47], vcc")
    e(f"buffer_store_dword v2, v3, s[{srd}:{srd+3}], s44 offen")


def gen_k2(name, dbg=False):
    a = Asm()
    e = a.e
    R = S4Regs()
    e("s_cmp_ge_u32 s2, 144")
    e("s_cbranch_scc1 K2_END")
    if dbg:
        e("s_memrealtime s[60:61]")
    e("s_load_dwordx4 s[44:47], s[0:1], 8")
    e("s_load_dwordx4 s[48:51], s[0:1], 24")
    e("s_load_dwordx2 s[52:53], s[0:1], 40")
    e("s_load_dwordx2 s[54:55], s[0:1], 96")
    e(f"v_and_b32 v{R.lane}, 63, v0")
    e("v_lshrrev_b32 v2, 6, v0")
    e("s_lshl_b32 s29, s2, 2")
    e("s_nop 0")
    e("v_readfirstlane_b32 s28, v2")
    e("s_nop 3")
    e("s_add_u32 s29, s29, s28")
    e(f"s_mul_i32 s30, s28, {WAVE_LDS}")
    e("s_waitcnt lgkmcnt(0)")
    srd = {"la": 4, "ai": 8, "cr": 12, "ci": 16, "ldt": 20}
    for nm, lo, size in (("la", 44, 147456), ("ai", 46, 147456), ("cr", 48, 147456), ("ci", 50, 147456), ("ldt", 52, 1152)):
        S = srd[nm]
        e(f"s_mov_b32 s{S}, s{lo}")
        e(f"s_mov_b32 s{S+1}, s{lo+1}")
        e(f"s_mov_b32 s{S+2}, {size}")
        e(f"s_mov_b32 s{S+3}, 0x20000")
    e("s_mov_b32 s24, s54")
    e("s_mov_b32 s25, s55")
    e("s_mov_b32 s26, 0x1800000")
    e("s_mov_b32 s27, 0x20000")
    gen_s4_body(a, R, 29, 30, srd, 24, 32, dbg=dbg)
    if dbg:
        simple_stamps(a, 5, 0x1740000, R.lane, 24, 28)
    a.label("K2_END")
    e("s_endpgm")
    return kernel_head(name) + a.text() + "\n" + kernel_desc(name, 512, 256)
```

```python
from build import *
import k1, s4, fin, sys
from asmgen import *
names = ("ffn_kernel", "s4_kernel", "fin_kernel")
def empty(name):
    return kernel_head(name) + "    s_endpgm\n" + kernel_desc(name, 8, 8, 16)
L = [(names[0], 256, 256, k1.K1_LDS), (names[1], 144, 256, s4.K2_LDS), (names[2], 576, 256, 0)]
B = [k1.gen_k1(names[0]), s4.gen_k2(names[1]), fin.gen_k3(names[2])]
E = ("nop_kernel", 1, 64, 0)
assemble(L, B, "x_a.s")
assemble(L + [E], B + [empty("nop_kernel")], "x_b.s")
assemble([E] + L, B + [empty("nop_kernel")], "x_c.s")
assemble(L + [E, E, E, E], B + [empty("nop_kernel")], "x_d.s")
assemble([E, E, E, E] + L, B + [empty("nop_kernel")], "x_e.s")
for n in "abcde": to_co(f"x_{n}.s", f"x_{n}.co")
```

```python
from asmgen import *

WS_UT = 0
WS_YT = 0x250000

KR0 = 16
KR1 = KR0 + 5120 + 64
KR_BYTES = 10368
UB = 0
U_BYTES = 4608
assert KR1 + 5120 <= KR_BYTES

GAP = "@gap"


def expansion(lane, s_lds, s_ub, s_kp, st, ad, t, T, O, TB):
    L = lane
    F = []
    e = F.append
    SW, LO, HI, MX = st, st + 1, st + 2, st + 3
    CH, S3, S2, S1, S0, SEL = ad, ad + 1, ad + 2, ad + 3, ad + 4, ad + 5
    e(f"s_mov_b32 s{SW}, 0x01000302")
    e(f"s_mov_b32 s{LO}, 0x01000100")
    e(f"s_mov_b32 s{HI}, 0x03020302")
    e(f"s_mov_b32 s{MX}, 0x03020504")
    for i in range(4):
        e(f"v_mov_b32 v{O+16+i}, 0")
    e(f"v_lshlrev_b32 v{CH}, 4, v{L}")
    e(f"v_add_u32 v{t}, s{s_ub}, v{CH}")
    e(f"ds_write_b128 v{t}, {vr(O+16,4)} offset:{UB}")
    e(f"v_add_u32 v{CH}, s{s_lds}, v{CH}")
    e(f"v_lshlrev_b32 v{t}, 1, v{L}")
    e(f"v_sub_u32 v{S3}, {2*(639-64)}, v{t}")
    e(f"v_lshlrev_b32 v{t}, 2, v{L}")
    e(f"v_sub_u32 v{S2}, {2*(766-256)}, v{t}")
    e(f"v_lshlrev_b32 v{t}, 3, v{L}")
    e(f"v_sub_u32 v{S1}, {2*(1148-4*192)}, v{t}")
    e(f"v_lshlrev_b32 v{t}, 4, v{L}")
    e(f"v_sub_u32 v{S0}, {2*(2040-8*192)}, v{t}")
    e(f"v_max_i32 v{S1}, 0, v{S1}")
    e(f"v_min_i32 v{S0}, 496, v{S0}")
    for r in (S3, S2, S1, S0):
        e(f"v_add_u32 v{r}, s{s_kp}, v{r}")
    e(f"v_and_b32 v{t}, 1, v{L}")
    e(f"v_cmp_eq_u32 vcc, 1, v{t}")
    e(f"v_mov_b32 v{t+1}, s{LO}")
    e(f"v_mov_b32 v{t+2}, 0x05040100")
    e(f"v_cndmask_b32 v{SEL}, v{t+1}, v{t+2}, vcc")
    e(f"ds_read_u16 v{T}, v{S3} offset:128")
    e(f"ds_read_u16 v{TB}, v{S3} offset:130")
    e(f"ds_read_u16 v{T+1}, v{S3}")
    e(f"ds_read_u16 v{TB+1}, v{S3} offset:2")
    e(f"ds_read_b32 v{T+2}, v{S2}")
    e(f"ds_read_u16 v{T+3}, v{S2} offset:4")
    e(f"ds_read_b64 {vr(T+4,2)}, v{S1}")
    e(f"ds_read_u16 v{T+6}, v{S1} offset:8")
    e(f"ds_read_b128 {vr(T+8,4)}, v{S0}")
    e(GAP)
    for m in range(2):
        o = O + 4 * m
        e(f"v_perm_b32 v{o}, v{TB+m}, v{TB+m}, s{LO}")
        e(f"v_perm_b32 v{o+1}, v{T+m}, v{TB+m}, v{SEL}")
        e(f"v_perm_b32 v{o+2}, v{T+m}, v{T+m}, s{LO}")
        e(f"v_perm_b32 v{o+3}, v{T+m}, v{T+m}, s{LO}")
    o = O + 8
    e(f"v_perm_b32 v{o}, v{T+3}, v{T+3}, s{LO}")
    e(f"v_perm_b32 v{o+1}, v{T+2}, v{T+2}, s{HI}")
    e(f"v_perm_b32 v{o+2}, v{T+2}, v{T+2}, s{SW}")
    e(f"v_perm_b32 v{o+3}, v{T+2}, v{T+2}, s{LO}")
    o = O + 12
    e(f"v_perm_b32 v{o}, v{T+6}, v{T+5}, s{MX}")
    e(f"v_perm_b32 v{o+1}, v{T+5}, v{T+5}, s{LO}")
    e(f"v_perm_b32 v{o+2}, v{T+5}, v{T+4}, s{MX}")
    e(f"v_perm_b32 v{o+3}, v{T+4}, v{T+4}, s{LO}")
    e(f"v_cmp_gt_u32 vcc, 32, v{L}")
    for i in range(4):
        e(f"v_perm_b32 v{T+i}, v{T+11-i}, v{T+11-i}, s{SW}")
    for i in range(4):
        e(f"v_cndmask_b32 v{o+i}, v{T+i}, v{o+i}, vcc")
    for m in range(5):
        e(f"ds_write_b128 v{CH}, {vr(O+4*m,4)} offset:{KR0 + m*1024}")
    e(GAP)
    for m in range(5):
        e(f"ds_read_b32 v{T+m}, v{CH} offset:{KR0 + m*1024 - 4}")
    e(GAP)
    for m in range(5):
        o = O + 4 * m
        e(f"v_alignbit_b32 v{T+5}, v{o}, v{T+m}, 16")
        e(f"v_alignbit_b32 v{T+6}, v{o+1}, v{o}, 16")
        e(f"v_alignbit_b32 v{T+7}, v{o+2}, v{o+1}, 16")
        e(f"v_alignbit_b32 v{T+8}, v{o+3}, v{o+2}, 16")
        e(f"v_mov_b32 v{o}, v{T+5}")
        e(f"v_mov_b32 v{o+1}, v{T+6}")
        e(f"v_mov_b32 v{o+2}, v{T+7}")
        e(f"v_mov_b32 v{o+3}, v{T+8}")
        e(f"ds_write_b128 v{CH}, {vr(o,4)} offset:{KR1 + m*1024}")
    return F


class Regs:
    def __init__(self):
        self.lane = 1
        self.t = 2
        self.tmp = 44
        self.acc = 96
        self.af = 128
        self.ad = 160
        self.ur = 176


def gen_conv(a, R, s_ch, s_lds, s_ub, srd_ws, st, useq, publish_sc="", hooks=None, progressive=True, PRE=3):
    e = a.e
    L = R.lane
    hooks = hooks or {}
    UR = R.ur
    UA = R.ad
    KA = R.ad + 1
    e(f"v_lshlrev_b32 v{R.t+6}, 4, v{L}")
    e(f"v_add_u32 v{R.t+6}, s{s_ub}, v{R.t+6}")
    e(f"v_and_b32 v{R.t}, 15, v{L}")
    e(f"v_lshrrev_b32 v{R.t+1}, 4, v{L}")
    a.wait(vm=a.vm_n(useq))
    for kq in range(4):
        e(f"ds_write_b128 v{R.t+6}, {vr(UR+4*kq,4)} offset:{UB+480+kq*1024}")
    e(f"v_lshlrev_b32 v{UA}, 5, v{R.t}")
    e(f"v_lshl_add_u32 v{UA}, v{R.t+1}, 4, v{UA}")
    e(f"v_add_u32 v{UA}, s{s_ub}, v{UA}")
    e(f"v_lshlrev_b32 v{R.t+2}, 3, v{R.t+1}")
    e(f"v_sub_u32 v{R.t+2}, v{R.t+2}, v{R.t}")
    e(f"v_lshlrev_b32 v{R.t+2}, 1, v{R.t+2}")
    e(f"v_and_b32 v{R.t+3}, 1, v{R.t}")
    e(f"v_cmp_eq_u32 vcc, 1, v{R.t+3}")
    e(f"v_mov_b32 v{R.t+4}, {KR1 + 2*2032}")
    e(f"v_mov_b32 v{R.t+5}, {KR0 + 2*2031}")
    e(f"v_cndmask_b32 v{R.t+4}, v{R.t+4}, v{R.t+5}, vcc")
    e(f"v_add_u32 v{R.t+2}, v{R.t+2}, v{R.t+4}")
    e(f"v_add_u32 v{R.t+2}, s{s_lds}, v{R.t+2}")
    for g in range(4):
        e(f"v_subrev_u32 v{KA+g}, {64*(16*g+15)}, v{R.t+2}")
    YA = R.t + 2
    e(f"v_lshlrev_b32 v{YA}, 5, v{R.t}")
    e(f"v_and_b32 v{R.t+3}, 1, v{R.t+1}")
    e(f"v_lshl_add_u32 v{YA}, v{R.t+3}, 9, v{YA}")
    e(f"v_lshrrev_b32 v{R.t+3}, 1, v{R.t+1}")
    e(f"v_lshl_add_u32 v{YA}, v{R.t+3}, 4, v{YA}")
    e(f"s_lshl_b32 s{st}, s{s_ch}, 12")
    e(f"s_add_u32 s{st}, s{st}, {WS_YT}")

    def y_store(p):
        o = R.tmp + 4 * (p % 2)
        cx, cy = R.acc + 8 * p, R.acc + 8 * p + 4
        e(f"v_cvt_pk_bf16_f32 v{o}, v{cx}, v{cx+1}")
        e(f"v_cvt_pk_bf16_f32 v{o+1}, v{cx+2}, v{cx+3}")
        e(f"v_cvt_pk_bf16_f32 v{o+2}, v{cy}, v{cy+1}")
        e(f"v_cvt_pk_bf16_f32 v{o+3}, v{cy+2}, v{cy+3}")
        e("s_nop 1")
        e(f"v_permlane16_swap_b32 v{o}, v{o+2}")
        e(f"v_permlane16_swap_b32 v{o+1}, v{o+3}")
        a.vmem(f"buffer_store_dwordx4 {vr(o,4)}, v{YA}, s[{srd_ws}:{srd_ws+3}], s{st} offen offset:{1024*p}{publish_sc}")
    a.wait(lgkm=0)
    NB = 8

    def aread(ee):
        r = R.af + 4 * (ee % NB)
        g = ee // 16
        o = 16 * (16 * g + 15 - ee)
        return [f"ds_read2_b32 {vr(r,2)}, v{KA+g} offset0:{o} offset1:{o+1}",
                f"ds_read2_b32 {vr(r+2,2)}, v{KA+g} offset0:{o+2} offset1:{o+3}"]

    def bread(m):
        return f"ds_read_b128 {ar(4*m,4)}, v{UA} offset:{UB + 64*m}"
    order = [8 * j + 7 - k for k in range(8) for j in range(8)]
    for m in order[:8]:
        e(bread(m))
    for x in aread(0):
        e(x)
    if "stamp" in hooks:
        hooks["stamp"]()
    pend_b = order[8:]
    outstanding = []
    outstanding += [("b", m) for m in order[:8]] + [("a", 0), ("a", 0)]

    def issue(tag, text):
        while len(outstanding) >= 14:
            n = len(outstanding) - 8
            a.wait(lgkm=8)
            del outstanding[:n]
        e(text)
        outstanding.append(tag)

    def need(tags):
        idx = max([i for i, tg in enumerate(outstanding) if tg in tags] or [-1])
        if idx >= 0:
            a.wait(lgkm=len(outstanding) - idx - 1)
            del outstanding[:idx + 1]
    for ee in range(1, PRE):
        for x in aread(ee):
            issue(("a", ee), x)
    for ee in range(64):
        jmin = max(0, -(-(ee - 7) // 8))
        ms = [8 * j - ee + 7 for j in range(jmin, 8)]
        need({("a", ee)} | {("b", m) for m in ms})
        side = []
        if ee + PRE < 64:
            side += [(("a", ee + PRE), x) for x in aread(ee + PRE)]
        if pend_b:
            nb = 8
            side += [(("b", m), bread(m)) for m in pend_b[:nb]]
            pend_b = pend_b[nb:]
        k = 0
        for j in range(jmin, 8):
            c = R.acc + 4 * j
            cin = "0" if ee == 0 else vr(c, 4)
            m = 8 * j - ee + 7
            e(f"v_mfma_f32_16x16x32_bf16 {vr(c,4)}, {vr(R.af + 4*(ee % NB),4)}, {ar(4*m,4)}, {cin}")
            n_here = -(-len(side) // (8 - j)) if side else 0
            for _ in range(n_here):
                tg, x = side.pop(0)
                issue(tg, x)
            k += 1
        if ("hook", ee) in hooks:
            hooks[("hook", ee)]()
        if progressive and ee in (17, 33, 49):
            y_store((ee - 17) // 16)
    if "stamp" in hooks:
        hooks["stamp"]()
    e("s_nop 7")
    for p in range(4):
        if p == 3 or not progressive:
            y_store(p)
```

```python
from asmgen import *
from sched import schedule
import struct

def fbits(x):
    return struct.unpack('<I', struct.pack('<f', x))[0]

PITCH = 528
TAB_BYTES = 53 * PITCH
LOG2E = fbits(1.4426950408889634)
INV2PI = fbits(0.15915494309189535)


def cmul(d, x, w, t):
    return [f"v_pk_mul_f32 {vr(t,2)}, {vr(x,2)}, {vr(w,2)} op_sel:[0,0] op_sel_hi:[1,0]",
            f"v_pk_fma_f32 {vr(d,2)}, {vr(x,2)}, {vr(w,2)}, {vr(t,2)} op_sel:[1,1,0] op_sel_hi:[0,1,1] neg_lo:[1,0,0]"]


def gen_kgen(a, lane, s_ch, s_tab, s_par, st, base=44, stamp=None, inject=(), in_regs=False, staged=True):
    e = a.e
    L = lane
    RAW, DT, T0 = base, base + 5, base + 6
    WB, AD = base + 12, base + 13
    M = [base + 20, base + 52]
    CV = base + 84
    FA, FB = base + 100, base + 116
    KACC = base + 132 - 16
    FA, FB, KACC = base + 100, base + 108, base + 116
    ZR, ZI, W1, W2, W4, W8, W16, W256, XA, XB, E0, E1, TP = 0, 1, 2, 4, 6, 8, 10, 12, 14, 16, 18, 20, 22
    if not in_regs:
        e(f"v_lshlrev_b32 v{T0}, 2, v{L}")
        e(f"v_add_u32 v{T0}, s{s_par}, v{T0}")
        for k in range(5):
            e(f"ds_read_b32 v{RAW+k}, v{T0} offset:{256*k}")
    e(f"s_mov_b32 m0, s{s_tab}")
    e(f"v_and_b32 v{T0}, 31, v{L}")
    e(f"v_lshrrev_b32 v{T0+1}, 5, v{L}")
    e(f"v_mul_u32_u24 v{T0+2}, {PITCH}, v{T0}")
    e(f"v_lshl_add_u32 v{T0+2}, v{T0+1}, 4, v{T0+2}")
    e(f"v_add_u32 v{AD}, s{s_tab}, v{T0+2}")
    e(f"v_add_u32 v{AD+1}, {21*PITCH}, v{AD}")
    e(f"s_mov_b32 s{st+1}, {LOG2E:#x}")
    e(f"s_and_b32 s{st}, s{s_ch}, 1")
    e(f"s_lshl_b32 s{st}, s{st}, 4")
    e(f"s_sub_u32 s{st}, 16, s{st}")
    if in_regs:
        e("s_waitcnt vmcnt(2)" if staged else "s_waitcnt vmcnt(0)")
    else:
        a.wait(lgkm=0)
    if stamp:
        stamp()
    C = []
    c = C.append
    c(f"v_lshlrev_b32 v{DT}, s{st}, v{RAW+4}")
    c(f"v_and_b32 v{DT}, 0xffff0000, v{DT}")
    c(f"v_mul_f32 v{DT}, s{st+1}, v{DT}")
    c(f"v_exp_f32 v{DT}, v{DT}")
    c(f"v_cvt_pk_bf16_f32 v{DT}, v{DT}, v{DT}")
    c(f"v_lshlrev_b32 v{DT}, 16, v{DT}")
    for p in range(2):
        B = M[p]
        t = B + TP

        def up(dst, src):
            c(f"v_lshlrev_b32 v{dst}, 16, v{src}" if p == 0 else f"v_and_b32 v{dst}, 0xffff0000, v{src}")
        up(t, RAW)
        c(f"v_mul_f32 v{t}, s{st+1}, v{t}")
        c(f"v_exp_f32 v{t}, v{t}")
        up(t + 1, RAW + 1)
        c(f"v_cvt_pk_bf16_f32 v{t}, v{t}, v{t}")
        c(f"v_lshlrev_b32 v{t}, 16, v{t}")
        c(f"v_mul_f32 v{B+ZR}, -v{t}, v{DT}")
        c(f"v_mul_f32 v{B+ZI}, v{t+1}, v{DT}")
        c(f"v_mul_f32 v{B+ZR}, s{st+1}, v{B+ZR}")
        c(f"v_mul_f32 v{B+ZI}, {INV2PI:#x}, v{B+ZI}")
        for k, (d, pw) in enumerate(((W1, 1), (W8, 8), (W256, 256))):
            u = t + 2 + 2 * k
            if pw == 1:
                c(f"v_exp_f32 v{u}, v{B+ZR}")
                c(f"v_fract_f32 v{u+1}, v{B+ZI}")
            else:
                c(f"v_mul_f32 v{u}, {fbits(float(pw)):#x}, v{B+ZR}")
                c(f"v_mul_f32 v{u+1}, {fbits(float(pw)):#x}, v{B+ZI}")
                c(f"v_exp_f32 v{u}, v{u}")
                c(f"v_fract_f32 v{u+1}, v{u+1}")
            c(f"v_cos_f32 v{B+d}, v{u+1}")
            c(f"v_sin_f32 v{B+d+1}, v{u+1}")
            c(f"v_mul_f32 v{B+d}, v{B+d}, v{u}")
            c(f"v_mul_f32 v{B+d+1}, v{B+d+1}, v{u}")
        for x in cmul(B + W2, B + W1, B + W1, t) + cmul(B + W16, B + W8, B + W8, t + 2) + cmul(B + W4, B + W2, B + W2, t):
            c(x)
        c(f"v_mov_b32 v{B+E0}, 1.0")
        c(f"v_mov_b32 v{B+E0+1}, 0")
        c(f"v_mov_b32 v{B+E1}, v{B+W8}")
        c(f"v_mov_b32 v{B+E1+1}, v{B+W8+1}")
    C1 = list(C)
    C.clear()
    for p in range(2):
        B = M[p]

        def up(dst, src):
            c(f"v_lshlrev_b32 v{dst}, 16, v{src}" if p == 0 else f"v_and_b32 v{dst}, 0xffff0000, v{src}")
        up(B + XA, RAW + 2)
        up(B + XA + 1, RAW + 3)
        c(f"v_mul_f32 v{B+XA}, v{B+XA}, v{DT}")
        c(f"v_mul_f32 v{B+XA+1}, v{B+XA+1}, v{DT}")
        c(f"v_mul_f32 v{B+XA}, {fbits(2.0 / -1.4426950408889634):#x}, v{B+XA}")
        c(f"v_mul_f32 v{B+XA+1}, {fbits(2.0 / -1.4426950408889634):#x}, v{B+XA+1}")
    ncv = [0]

    def put(row, reg, neg):
        k = CV + 2 * (ncv[0] % 8)
        ncv[0] += 1
        n = "-" if neg else ""
        for p in range(2):
            c(f"v_cvt_pk_bf16_f32 v{k+p}, v{M[p]+reg}, {n}v{M[p]+reg+1}")
        for p in range(2):
            c(f"ds_write_addtid_b32 v{k+p} offset:{row*PITCH + 256*p}")

    def mul(d, x, w, tp):
        for half in range(2):
            for p in range(2):
                c(cmul(M[p] + d, M[p] + x, M[p] + w, M[p] + TP + tp)[half])

    xs = [("put", 0, XA), ("mul", XB, XA, W256, 4)]
    for r in range(1, 8):
        xs += [("mul", XA, XA, W1, 6), ("put", r, XA)]
    xs += [("put", 8, XB), ("mul", XA, XB, W2, 6), ("put", 9, XA), ("mul", XB, XB, W256, 4),
           ("mul", XA, XA, W2, 6), ("put", 10, XA), ("mul", XA, XA, W2, 6), ("put", 11, XA),
           ("put", 12, XB), ("mul", XA, XB, W4, 6), ("put", 13, XA), ("mul", XB, XB, W256, 4), ("put", 14, XB),
           ("mul", XA, XB, W4, 6), ("put", 15, XA)]
    for r in range(16, 21):
        xs += [("mul", XB, XB, W256, 4), ("put", r, XB)]
    es = [("put", 21, E0, True), ("put", 22, E1, True)]
    for col in range(2, 32, 2):
        es += [("mul", E0, E0, W16, 0), ("mul", E1, E1, W16, 2), ("put", 21 + col, E0, True), ("put", 22 + col, E1, True)]
    i = j = 0
    while i < len(xs) or j < len(es):
        for lst, idx in ((es, j), (es, j + 1), (xs, i)):
            pass
        for _ in range(3):
            if j < len(es):
                x = es[j]; j += 1
                mul(*x[1:]) if x[0] == "mul" else put(x[1], x[2], True)
        for _ in range(2):
            if i < len(xs):
                x = xs[i]; i += 1
                mul(*x[1:]) if x[0] == "mul" else put(x[1], x[2], False)
    inj = list(inject)
    if staged and in_regs:
        for x in schedule(C1, dist=4, window=64):
            e(x)
        e("s_waitcnt vmcnt(0)")
    else:
        C[:0] = C1
    for i, x in enumerate(schedule(C, dist=4, window=64)):
        e(x)
        if inj and i % 14 == 5:
            e(inj.pop(0))
    assert not inj
    a.wait(lgkm=0)
    if stamp:
        stamp()
    NR = 7
    FR = M[0]

    def rd(s):
        r = FR + 8 * (s % NR)
        e(f"ds_read_b128 {vr(r,4)}, v{AD} offset:{s*32}")
        e(f"ds_read_b128 {vr(r+4,4)}, v{AD+1} offset:{s*32}")
    for s in range(NR):
        rd(s)
    for s in range(16):
        left = min(NR - 1, 15 - s)
        a.wait(lgkm=2 * left)
        r = FR + 8 * (s % NR)
        cin = "0" if s == 0 else vr(KACC, 16)
        e(f"v_mfma_f32_32x32x16_bf16 {vr(KACC,16)}, {vr(r,4)}, {vr(r+4,4)}, {cin}")
        if s + NR < 16:
            rd(s + NR)
    if stamp:
        stamp()
    col, h = T0, T0 + 1
    A0, A1, A2, A3 = AD + 2, AD + 3, AD + 4, AD + 5
    e(f"v_and_b32 v{col}, 31, v{L}")
    e(f"v_lshrrev_b32 v{h}, 5, v{L}")
    e(f"v_lshlrev_b32 v{A0}, 4, v{col}")
    e(f"v_lshl_add_u32 v{A0}, v{h}, 3, v{A0}")
    e(f"v_cmp_eq_u32 vcc, 0, v{h}")
    e(f"v_lshlrev_b32 v{T0+2}, 3, v{col}")
    e(f"v_lshlrev_b32 v{T0+3}, 2, v{col}")
    e(f"v_add_u32 v{T0+4}, 512, v{T0+2}")
    e(f"v_add_u32 v{T0+5}, 768, v{T0+3}")
    e(f"v_cndmask_b32 v{A1}, v{T0+5}, v{T0+4}, vcc")
    e(f"v_add_u32 v{T0+4}, 516, v{T0+2}")
    e(f"v_add_u32 v{T0+5}, 896, v{T0+3}")
    e(f"v_cndmask_b32 v{A2}, v{T0+5}, v{T0+4}, vcc")
    e(f"v_lshlrev_b32 v{T0+2}, 1, v{col}")
    e(f"v_lshl_add_u32 v{A3}, v{h}, 8, v{T0+2}")
    e(f"v_add_u32 v{A3}, 1024, v{A3}")
    for r in (A0, A1, A2, A3):
        e(f"v_add_u32 v{r}, s{s_par}, v{r}")
    e("s_nop 7")
    K = KACC
    for i in range(6):
        e(f"v_cvt_pk_bf16_f32 v{CV+i}, v{K+2*i}, v{K+2*i+1}")
    e(f"ds_write_b64 v{A0}, {vr(CV,2)}")
    e(f"ds_write_b32 v{A1}, v{CV+2}")
    e(f"ds_write_b32 v{A2}, v{CV+3}")
    e(f"ds_write_b16 v{A3}, v{CV+4}")
    e(f"ds_write_b16_d16_hi v{A3}, v{CV+4} offset:64")
    e(f"ds_write_b16 v{A3}, v{CV+5} offset:128")
    e(f"ds_write_b16_d16_hi v{A3}, v{CV+5} offset:192")
```

```python
from asmgen import *
import conv as CV
import kgen as KG
from sched import schedule
from fin import unpack2, round_pair

WS_UT = 0
WS_FLAG2 = 0x244000
WS_FLAG3 = 0x245000
WS_FLAG3X = 0x248000
WS_YT = 0x250000
WS_PART = 0x500000
WS_STAMP = 0x1700000
WS_SIZE = 0x1800000

EX = 0
TMP = 73728
RING = 90112
STATS = RING + 4 * 16384
S3WORD = STATS + 512
PARAM = STATS + 1024
LDS_BYTES = PARAM + 4 * 1536
GBUF = 63488
YBUF = 3 * 10368

S_X, S_W1, S_W2, S_WS = 4, 8, 12, 16
S_WV, S_J, S_T, S_WN, S_WK = 20, 21, 22, 23, 24
S_RB = 25
S_BASE = {('S', 1): 26, ('F', 1, 0): 27, ('F', 1, 1): 28, ('S', 2): 31, ('F', 2, 0): 32, ('F', 2, 1): 33}
S_SOFF = 30
S_U0, S_U1 = 34, 35
S_TMP0, S_TMP1, S_TMP2, S_NL2E = 36, 37, 38, 39
S_PU0, S_PU1, S_PUS = 40, 41, 42
S_ROT = 43
S_P = 44
S_K1, S_K2 = 60, 78
S_CH, S_PAR, S_ROLE, S_LDS = 52, 53, 54, 55
S_DBG = 56
S_UT = 29
S_UB = 66
S_XB = 97
S_F3A, S_F3B, S_F3X = 3, 100, 101
S_ST = 96

V_LANE = 1
V_DF1, V_DS1, V_AF1, V_AS1 = 4, 8, 10, 14
V_DF2, V_DS2, V_AF2, V_AS2 = 16, 20, 22, 26
V_L16, V_L16H = 28, 29
V_EXH, V_EXH2, V_EXS = 30, 3, 60
V_AFX = 34
V_TW, V_TR = 31, 32
V_PART = 33
V_T = 34
V_PK = 42
V_X0 = 50
V_STAMP = 63
V_A = 64
V_ACC = (96, 160)
V_BX = 224
V_D = 44
V_XR = 184

SC1 = " sc1"


def Breg(s, tt):
    idx = 4 * s + tt
    if idx < 64:
        return ar(4 * idx, 4)
    return vr(V_BX + 4 * (idx - 64), 4)


def Areg(buf, f):
    return V_A + 16 * buf + 4 * f


def acc_g1r1(f, tt):
    return acc(0, f, tt) if f < 2 else V_ACC[1] + 32 + ((f - 2) * 4 + tt) * 4


def acc(b, f, tt):
    return V_ACC[b] + (f * 4 + tt) * 4


class Step:
    def __init__(self, n, kind, g, r, s):
        self.n, self.kind, self.g, self.r, self.s = n, kind, g, r, s


def make_steps():
    st = []
    for g in (1, 2):
        for i in range(18):
            st.append(Step(len(st), 'F', g, 0, i))
        for i in range(9):
            st.append(Step(len(st), 'S', g, None, i))
        for i in range(18):
            st.append(Step(len(st), 'F', g, 1, i))
    return st


def silu_chain(regs, t0):
    out = []
    n = len(regs)
    for i, x in enumerate(regs):
        out.append(f"v_exp_f32 v{t0+i}, v{x}")
    for i in range(n):
        out.append(f"v_add_f32 v{t0+i}, 1.0, v{t0+i}")
    for i in range(n):
        out.append(f"v_rcp_f32 v{t0+i}, v{t0+i}")
    for i, x in enumerate(regs):
        out.append(f"v_mul_f32 v{x}, v{x}, v{t0+i}")
    return out


def srd(e, S, lo, size):
    e(f"s_mov_b32 s{S}, s{lo}")
    e(f"s_mov_b32 s{S+1}, s{lo+1}")
    e(f"s_mov_b32 s{S+2}, {size}")
    e(f"s_mov_b32 s{S+3}, 0x20000")


SPIN_LIMIT = 50000
DBG_WG = 100


def gen(name, dbg=False, opt=None):
    opt = opt or {}
    PSC = opt.get('psc', SC1)
    a = Asm()
    e = a.e
    steps = make_steps()
    NS = len(steps)
    L = V_LANE
    nst = [0]
    stamp_reg = [V_STAMP]

    def stamp(early=False, final=False):
        if not dbg:
            return
        if dbg == "e" and not final and nst[0] > 0:
            return
        if dbg == "e" and final:
            nst[0] = 1
        e(f"s_memtime s[{S_ST}:{S_ST+1}]" if dbg in ("c", "t", "u") else f"s_memrealtime s[{S_ST}:{S_ST+1}]")
        e("s_waitcnt lgkmcnt(0)")
        if early:
            e(f"v_writelane_b32 v43, s{S_ST}, {nst[0]}")
        else:
            e(f"v_writelane_b32 v{stamp_reg[0]}, s{S_ST}, {nst[0]}")
        nst[0] += 1

    e("s_cmp_ge_u32 s2, 256")
    e("s_cbranch_scc1 M_END")
    e(f"s_load_dwordx2 s[{S_P}:{S_P+1}], s[0:1], 0")
    e(f"s_load_dwordx4 s[{S_P+4}:{S_P+7}], s[0:1], 64")
    e(f"s_load_dwordx2 s[{S_P+2}:{S_P+3}], s[0:1], 96")
    e("s_load_dwordx8 s[60:67], s[0:1], 8")
    e("s_load_dwordx2 s[68:69], s[0:1], 40")
    e("s_load_dwordx2 s[70:71], s[0:1], 88")
    e("s_load_dwordx2 s[72:73], s[0:1], 48")
    e("s_load_dwordx2 s[74:75], s[0:1], 80")
    e(f"v_and_b32 v{L}, 63, v0")
    e("v_lshrrev_b32 v2, 6, v0")
    e(f"s_and_b32 s{S_TMP0}, s2, 7")
    e(f"s_lshr_b32 s{S_TMP1}, s2, 3")
    e(f"v_readfirstlane_b32 s{S_WV}, v2")
    e(f"s_lshr_b32 s{S_T}, s{S_TMP0}, 2")
    e(f"s_lshl_b32 s{S_T}, s{S_T}, 4")
    e(f"s_lshr_b32 s{S_TMP2}, s{S_TMP1}, 1")
    e(f"s_add_u32 s{S_T}, s{S_T}, s{S_TMP2}")
    e(f"s_and_b32 s{S_J}, s{S_TMP0}, 3")
    e(f"s_lshl_b32 s{S_J}, s{S_J}, 1")
    e(f"s_and_b32 s{S_TMP1}, s{S_TMP1}, 1")
    e(f"s_add_u32 s{S_J}, s{S_J}, s{S_TMP1}")
    e("s_nop 0")
    def code_prefetch(k0, k1, tag):
        e(f"s_cmp_lg_u32 s{S_WV}, 3")
        e(f"s_cbranch_scc1 M_NOPF{tag}")
        e("s_getpc_b64 s[96:97]")
        a.label(f"M_PC{tag}")
        e(f"v_lshlrev_b32 v6, 7, v{L}")
        if k0:
            e(f"v_add_u32 v6, {k0*0x2000}, v6")
        e("v_mov_b32 v7, s97")
        if opt.get('pfloop', False):
            e(f"s_mov_b32 s{S_TMP0}, {k1 - k0}")
            a.label(f"M_PFL{tag}")
            e(f"v_min_u32 v4, M_END-M_PC{tag}, v6")
            e("v_add_co_u32 v4, vcc, s96, v4")
            e("v_add_u32 v6, 0x2000, v6")
            e(f"s_sub_u32 s{S_TMP0}, s{S_TMP0}, 1")
            e("v_addc_co_u32 v5, vcc, 0, v7, vcc")
            e(f"s_cmp_lg_u32 s{S_TMP0}, 0")
            e(f"global_load_dword v{39 if tag == 'A' else 0}, v[4:5], off")
            e(f"s_cbranch_scc1 M_PFL{tag}")
        else:
            for k in range(k0, k1):
                e(f"v_min_u32 v4, M_END-M_PC{tag}, v6")
                e("v_add_co_u32 v4, vcc, s96, v4")
                e("v_add_u32 v6, 0x2000, v6")
                e("s_nop 0")
                e("v_addc_co_u32 v5, vcc, 0, v7, vcc")
                e(f"global_load_dword v{39 if tag == 'A' else 0}, v[4:5], off")
        a.label(f"M_NOPF{tag}")
    def code_prefetch_all(nw, first):
        n = 8 // nw
        if first:
            e(f"s_cmp_lt_u32 s{S_WV}, {first}")
            e("s_cbranch_scc1 M_NOPFA")
        e("s_getpc_b64 s[96:97]")
        a.label("M_PCA")
        e(f"s_sub_u32 s{S_TMP0}, s{S_WV}, {first}")
        e(f"s_mul_i32 s{S_TMP0}, s{S_TMP0}, {n*0x2000}")
        e(f"v_lshlrev_b32 v6, 7, v{L}")
        e(f"v_add_u32 v6, s{S_TMP0}, v6")
        e("v_mov_b32 v7, s97")
        for k in range(n):
            e("v_min_u32 v4, M_END-M_PCA, v6")
            e("v_add_co_u32 v4, vcc, s96, v4")
            e("v_add_u32 v6, 0x2000, v6")
            e("s_nop 0")
            e("v_addc_co_u32 v5, vcc, 0, v7, vcc")
            e("global_load_dword v39, v[4:5], off")
        a.label("M_NOPFA")
    PF0 = opt.get('pf0', 8)
    if opt.get('pfall'):
        code_prefetch_all(*opt['pfall'])
    elif opt.get('pf', True) and PF0:
        code_prefetch(0, PF0, "A")
    if opt.get('startdelay'):
        e("s_memrealtime s[96:97]")
        e("s_waitcnt lgkmcnt(0)")
        e(f"s_add_u32 s3, s96, {opt['startdelay']}")
        a.label("M_DELAY0")
        e("s_memrealtime s[96:97]")
        e("s_waitcnt lgkmcnt(0)")
        e("s_cmp_lt_u32 s96, s3")
        e("s_cbranch_scc1 M_DELAY0")
    stamp(early=True)
    e(f"v_and_b32 v2, 15, v{L}")
    e(f"v_lshrrev_b32 v3, 4, v{L}")
    e(f"s_and_b32 s{S_WN}, s{S_WV}, 1")
    e(f"s_lshr_b32 s{S_WK}, s{S_WV}, 1")
    e(f"s_and_b32 s{S_TMP0}, s{S_T}, 3")
    e(f"s_lshl_b32 s{S_TMP0}, s{S_TMP0}, 1")
    e(f"s_bfe_u32 s{S_TMP1}, s{S_T}, 0x10003")
    e(f"s_add_u32 s{S_TMP0}, s{S_TMP0}, s{S_TMP1}")
    e(f"s_mul_i32 s{S_ROT}, s{S_TMP0}, 9")
    e(f"s_lshr_b32 s{S_ROT}, s{S_ROT}, 2")
    e(f"s_lshl_b32 s{S_TMP0}, s{S_T}, 6")
    e(f"s_lshl_b32 s{S_TMP1}, s{S_WV}, 4")
    e(f"s_add_u32 s{S_TMP0}, s{S_TMP0}, s{S_TMP1}")
    e(f"v_add_u32 v40, s{S_TMP0}, v2")
    e("v_mul_u32_u24 v51, 1152, v40")
    e("v_lshl_add_u32 v51, v3, 4, v51")
    def kappa_table():
        for s in range(18):
            e(f"s_add_u32 s{S_TMP0}, s{S_ROT}, {s}")
            e(f"s_cmp_ge_u32 s{S_TMP0}, 18")
            e(f"s_cselect_b32 s{S_TMP1}, 18, 0")
            e(f"s_sub_u32 s{S_TMP0}, s{S_TMP0}, s{S_TMP1}")
            e(f"s_lshl_b32 s{S_K2+s}, s{S_TMP0}, 6")

    if not opt.get('klate', False):
        kappa_table()
    e(f"s_lshl_b32 s{S_CH}, s2, 1")
    e(f"s_add_u32 s{S_CH}, s{S_CH}, s{S_WV}")
    e(f"s_mov_b32 s{S_ROLE}, 1")
    e(f"s_cmp_lt_u32 s{S_WV}, 2")
    e("s_cbranch_scc1 M_ROLE_DONE")
    e(f"s_add_u32 s{S_CH}, s2, 512")
    e(f"s_mov_b32 s{S_ROLE}, 0")
    e(f"s_cmp_eq_u32 s{S_WV}, 3")
    e("s_cbranch_scc1 M_ROLE_DONE")
    e(f"s_cmp_lt_u32 s2, 64")
    e(f"s_cselect_b32 s{S_ROLE}, 1, 0")
    a.label("M_ROLE_DONE")
    e(f"s_mul_i32 s{S_PAR}, s{S_WV}, 1536")
    e(f"s_add_u32 s{S_PAR}, s{S_PAR}, {PARAM}")
    e("s_waitcnt lgkmcnt(0)")
    dma_seq = {}
    DEEP0 = 999
    slot_of = {}

    unit_of, owner, plan = {}, {}, {}
    ptr = 0
    prev_owner = {}
    for st_ in steps:
        if st_.kind == 'F' and ptr % 2:
            ptr += 1
        need = 2 if st_.kind == 'F' else 1
        unit_of[st_.n] = ptr % 8
        prev_owner[st_.n] = max([owner.get((ptr + k) % 8, -1) for k in range(need)])
        for k in range(need):
            owner[(ptr + k) % 8] = st_.n
        ptr += need
    queue = [(st_.n, q) for st_ in steps for q in range(4 if st_.kind == 'F' else 2)]
    head = [q_ for q_ in queue if q_[0] < 4]
    queue = queue[len(head):]
    for st_ in steps:
        budget = 8 if st_.kind == 'F' else opt.get('sbudget', 2)
        plan[st_.n] = []
        while queue and budget and prev_owner[queue[0][0]] <= st_.n and (opt.get('balance', True) or queue[0][0] <= st_.n + 4):
            if not opt.get('balance', True):
                mm = queue[0][0]
                while queue and queue[0][0] == mm:
                    plan[st_.n].append(queue.pop(0))
                break
            plan[st_.n].append(queue.pop(0))
            budget -= 1
    assert not queue
    if opt.get('showplan'):
        print({n_: [f'{mm}.{q}' for (mm, q) in plan[n_]] for n_ in plan})
    issued_at = {mm: n_ for n_ in plan for (mm, q) in plan[n_]}
    for mm, n_ in issued_at.items():
        assert n_ <= mm - 2, (mm, n_)

    def slot_m0(n):
        return f"s_add_u32 m0, s{S_RB}, {unit_of[n]*2048}"

    def dma_ops(n, wk):
        st = steps[n]
        g = st.g
        sd = S_W1 if g == 1 else S_W2
        base = S_BASE[('S', g)] if st.kind == 'S' else S_BASE[('F', g, st.r)]
        tab = S_K1 if g == 1 else S_K2
        vo = {('S', 1): V_DS1, ('F', 1): V_DF1, ('S', 2): V_DS2, ('F', 2): V_DF2}[(st.kind, g)]
        cnt = 2 if st.kind == 'S' else 4
        ops = []

        def setup():
            e(slot_m0(n))
            if st.kind == 'F':
                e(f"s_add_u32 s{S_SOFF}, s{base}, s{tab+st.s}")
            elif wk is not None:
                e(f"s_add_u32 s{S_SOFF}, s{base}, s{tab+9*wk+st.s}")
            else:
                e(f"s_cmp_eq_u32 s{S_WK}, 0")
                e(f"s_cselect_b32 s{S_SOFF}, s{tab+st.s}, s{tab+9+st.s}")
                e(f"s_add_u32 s{S_SOFF}, s{S_SOFF}, s{base}")
        ops.append(setup)
        for qq in range(cnt):
            def ld(qq=qq):
                off = f" offset:{qq*1024}" if qq else ""
                dma_seq[n] = a.vmem(f"buffer_load_dwordx4 v{vo+qq}, s[{sd}:{sd+3}], s{S_SOFF} offen{off} lds")
            ops.append(ld)
        return ops

    def a_reads(n):
        st = steps[n]
        buf = n % 2
        sl = 0
        slot_off = unit_of[n] * 2048
        out = []
        if st.kind == 'F':
            va = V_AF1 if st.g == 1 else (V_AF2 if sl < 4 else V_AFX)
            pst = 512 if st.g == 1 else 2048
            nf = 4
        else:
            va = V_AS1 if st.g == 1 else V_AS2
            pst = 256 if st.g == 1 else 1024
            nf = 2
        for f in range(nf):
            for p in range(2):
                r = Areg(buf, f) + 2 * p
                out.append(f"ds_read_b64_tr_b16 {vr(r,2)}, v{va+f} offset:{slot_off+p*pst}")
        return out

    def setup():
        srd(e, S_DBG, 70, 256)
        srd(e, S_W1, S_P + 4, 5308416)
        srd(e, S_W2, S_P + 6, 5308416)
        srd(e, S_WS, S_P + 2, WS_SIZE)
        srd(e, 48, 72, 1152)
        e("s_mov_b32 s98, s74")
        e("s_mov_b32 s99, s75")
        for s in range(18):
            e(f"s_mul_i32 s{S_K1+s}, s{S_K2+s}, {32*9216//64}")
        e(f"s_lshl_b32 s{S_RB}, s{S_WV}, 14")
        e(f"s_add_u32 s{S_RB}, s{S_RB}, {RING}")
        e(f"s_add_u32 s{S_U0}, s{S_WV}, s{S_T}")
        e(f"s_add_u32 s{S_U1}, s{S_U0}, 4")
        e(f"s_and_b32 s{S_U0}, s{S_U0}, 7")
        e(f"s_and_b32 s{S_U1}, s{S_U1}, 7")
        e(f"s_mul_i32 s{S_TMP0}, s{S_J}, 1152")
        e(f"s_lshl_b32 s{S_TMP1}, s{S_U0}, 7")
        e(f"s_add_u32 s{S_BASE[('F',1,0)]}, s{S_TMP0}, s{S_TMP1}")
        e(f"s_lshl_b32 s{S_TMP1}, s{S_U1}, 7")
        e(f"s_add_u32 s{S_BASE[('F',1,1)]}, s{S_TMP0}, s{S_TMP1}")
        e(f"s_lshl_b32 s{S_TMP1}, s{S_WN}, 6")
        e(f"s_add_u32 s{S_TMP1}, s{S_TMP1}, 1024")
        e(f"s_add_u32 s{S_BASE[('S',1)]}, s{S_TMP0}, s{S_TMP1}")
        e(f"s_mul_i32 s{S_TMP0}, s{S_J}, 663552")
        e(f"s_lshl_b32 s{S_TMP2}, s{S_U0}, 7")
        e(f"s_add_u32 s{S_BASE[('F',2,0)]}, s{S_TMP0}, s{S_TMP2}")
        e(f"s_lshl_b32 s{S_TMP2}, s{S_U1}, 7")
        e(f"s_add_u32 s{S_BASE[('F',2,1)]}, s{S_TMP0}, s{S_TMP2}")
        e(f"s_add_u32 s{S_BASE[('S',2)]}, s{S_TMP0}, s{S_TMP1}")
        e(f"s_lshl_b32 s{S_PU0}, s{S_U0}, 16")
        e(f"s_lshl_b32 s{S_PU1}, s{S_U1}, 16")
        e(f"s_lshl_b32 s{S_PUS}, s{S_WN}, 15")
        e(f"s_lshl_b32 s{S_TMP0}, s{S_WK}, 14")
        e(f"s_add_u32 s{S_PUS}, s{S_PUS}, s{S_TMP0}")
        e(f"s_add_u32 s{S_PUS}, s{S_PUS}, {8*65536}")
        e(f"v_lshrrev_b32 v54, 3, v{L}")
        e(f"v_and_b32 v55, 7, v{L}")
        e(f"v_lshrrev_b32 v56, 2, v{L}")
        e(f"v_and_b32 v57, 3, v{L}")
        e(f"v_bfe_u32 v60, v{L}, 4, 1")
        e("v_lshlrev_b32 v60, 1, v60")
        e("v_xor_b32 v60, v55, v60")
        e("v_mul_u32_u24 v61, 9216, v54")
        for qq in range(4):
            if qq & 1:
                e("v_xor_b32 v2, 4, v60")
                e(f"v_lshl_add_u32 v{V_DF1+qq}, v2, 4, v61")
            else:
                e(f"v_lshl_add_u32 v{V_DF1+qq}, v60, 4, v61")
            if qq:
                e(f"v_add_u32 v{V_DF1+qq}, {qq*(8*9216-1024)}, v{V_DF1+qq}")

        e(f"v_bfe_u32 v60, v{L}, 5, 1")
        e("v_lshlrev_b32 v60, 1, v60")
        e("v_xor_b32 v60, v57, v60")
        e("v_mul_u32_u24 v61, 9216, v56")
        e(f"v_lshl_add_u32 v{V_DS1}, v60, 4, v61")
        e(f"v_add_u32 v{V_DS1+1}, {16*9216-1024}, v{V_DS1}")
        e(f"v_bfe_u32 v60, v{L}, 4, 2")
        e("v_lshlrev_b32 v60, 1, v60")
        e("v_xor_b32 v60, v55, v60")
        e("v_mul_u32_u24 v61, 1152, v54")
        e(f"v_lshl_add_u32 v{V_DF2}, v60, 4, v61")
        for qq in range(1, 4):
            e(f"v_add_u32 v{V_DF2+qq}, {qq*(8*1152-1024)}, v{V_DF2}")
        e(f"v_bfe_u32 v60, v{L}, 4, 1")
        e("v_lshlrev_b32 v60, 1, v60")
        e("v_xor_b32 v60, v57, v60")
        e("v_mul_u32_u24 v61, 1152, v56")
        e(f"v_lshl_add_u32 v{V_DS2}, v60, 4, v61")
        e(f"v_add_u32 v{V_DS2+1}, {16*1152-1024}, v{V_DS2}")
        e(f"v_and_b32 v2, 15, v{L}")
        e(f"v_lshrrev_b32 v3, 4, v{L}")
        e("v_lshrrev_b32 v52, 2, v2")
        e("v_and_b32 v53, 3, v2")
        e("v_lshrrev_b32 v54, 1, v53")
        e("v_and_b32 v55, 1, v53")
        e("v_lshlrev_b32 v55, 3, v55")
        e(f"v_add_u32 v55, s{S_RB}, v55")
        e("v_and_b32 v56, 1, v3")
        e("v_lshrrev_b32 v57, 1, v52")
        e("v_lshl_add_u32 v58, v3, 3, v52")
        e("v_lshl_or_b32 v59, v56, 1, v57")
        e("v_lshlrev_b32 v59, 1, v59")
        e("v_xor_b32 v59, v54, v59")
        e("v_lshl_add_u32 v59, v59, 4, v55")
        e(f"v_lshl_add_u32 v{V_AF1}, v58, 7, v59")
        for f in range(1, 4):
            e(f"v_xor_b32 v{V_AF1+f}, {f << 5}, v{V_AF1}")
        e("v_lshlrev_b32 v59, 1, v56")
        e("v_xor_b32 v59, v54, v59")
        e("v_lshl_add_u32 v59, v59, 4, v55")
        e(f"v_lshl_add_u32 v{V_AS1}, v58, 6, v59")
        e(f"v_xor_b32 v{V_AS1+1}, 32, v{V_AS1}")
        e("v_lshl_add_u32 v58, v3, 2, v52")
        e("v_bfe_u32 v59, v58, 1, 2")
        e("v_lshlrev_b32 v59, 1, v59")
        e("v_xor_b32 v59, v54, v59")
        e("v_lshl_add_u32 v59, v59, 4, v55")
        e(f"v_lshl_add_u32 v{V_AF2}, v58, 7, v59")
        for f in range(1, 4):
            e(f"v_xor_b32 v{V_AF2+f}, {f << 5}, v{V_AF2}")
        e("v_lshlrev_b32 v59, 1, v56")
        e("v_xor_b32 v59, v54, v59")
        e("v_lshl_add_u32 v59, v59, 4, v55")
        e(f"v_lshl_add_u32 v{V_AS2}, v58, 6, v59")
        e(f"v_xor_b32 v{V_AS2+1}, 32, v{V_AS2}")
        e(f"v_lshlrev_b32 v{V_L16}, 4, v{L}")
        e(f"v_add_u32 v{V_L16H}, 0x10000, v{V_L16}")
        e(f"s_lshl_b32 s{S_TMP0}, s{S_WV}, 12")
        e(f"s_add_u32 s{S_TMP0}, s{S_TMP0}, {TMP}")
        e(f"v_add_u32 v{V_TW}, s{S_TMP0}, v{V_L16}")
        e(f"s_xor_b32 s{S_TMP1}, s{S_WV}, 2")
        e(f"s_lshl_b32 s{S_TMP1}, s{S_TMP1}, 12")
        e(f"s_add_u32 s{S_TMP1}, s{S_TMP1}, {TMP}")
        e(f"v_add_u32 v{V_TR}, s{S_TMP1}, v{V_L16}")
        e(f"s_mul_i32 s{S_TMP0}, s{S_T}, {72*8}")
        e(f"s_add_u32 s{S_TMP0}, s{S_TMP0}, s{S_J}")
        e(f"s_lshl_b32 s{S_TMP0}, s{S_TMP0}, 10")
        e(f"s_add_u32 s{S_TMP0}, s{S_TMP0}, {WS_PART}")
        e(f"v_add_u32 v{V_PART}, s{S_TMP0}, v{V_L16}")


    def k2_convert():
        for s in range(18):
            e(f"s_mul_i32 s{S_K2+s}, s{S_K2+s}, {32*1152//64}")

    xl = []

    def x_load(s):
        return f"buffer_load_dwordx4 {vr(V_XR+4*s,4)}, v51, s[{S_X}:{S_X+3}], s{S_K2+s} offen"
    e(f"s_cmp_eq_u32 s{S_ROLE}, 0")
    e("s_cbranch_scc1 M_NOKGEN")
    srd(e, 56, 68, 1152)
    e(f"s_lshr_b32 s{S_TMP0}, s{S_CH}, 1")
    e(f"s_lshl_b32 s{S_TMP0}, s{S_TMP0}, 2")
    e("v_mov_b32 v2, 0")
    e(f"buffer_load_dword v48, v2, s[56:59], s{S_TMP0} offen")
    e(f"v_lshlrev_b32 v2, 2, v{L}")
    e(f"s_lshl_b32 s{S_TMP0}, s{S_CH}, 8")
    for k in range(4):
        srd(e, 56, 60 + 2 * k, 147456)
        e(f"buffer_load_dword v{44+k}, v2, s[56:59], s{S_TMP0} offen")
    srd(e, S_X, S_P, 2359296)
    if opt.get('klate', False):
        kappa_table()
    if not opt.get('xinject', True):
        for s in range(18):
            e(x_load(s))
    e("v_mov_b32 v42, v51")
    setup()
    e("v_mov_b32 v51, v42")
    e(f"s_mul_i32 s{S_LDS}, s{S_WV}, 28160")
    if dbg == "k":
        stamp(early=True)
    KG.gen_kgen(a, L, S_CH, S_LDS, S_PAR, S_P, in_regs=True, staged=opt.get('staged', True), stamp=(lambda: stamp(early=True)) if dbg == "k" else None,
                inject=[x_load(s).replace("v51", "v42") for s in range(18)] if opt.get('xinject', True) else [])
    k2_convert()
    a.wait(lgkm=0)
    e("s_barrier")
    e("s_mov_b32 s44, 0")
    OOL = opt.get('ool', False)
    if not OOL:
        e("s_branch M_LN")
    ool_start = len(a.lines)
    a.label("M_NOKGEN")
    srd(e, S_X, S_P, 2359296)
    if opt.get('klate', False):
        kappa_table()
    for s in range(18):
        xl.append(a.vmem(x_load(s)))
    if opt.get('pf', True) and PF0 < 8:
        code_prefetch(max(0, PF0 - 1), 8, "B")
    setup()
    k2_convert()
    e("s_mov_b32 s44, 1")
    ool_lines = []
    if OOL:
        e("s_branch M_LN")
        ool_lines = a.lines[ool_start:]
        del a.lines[ool_start:]
    a.label("M_LN")
    stamp(early=True)
    a.c("LayerNorm: row sums through MFMA with an all-ones A operand")
    for i in range(4):
        e(f"v_mov_b32 v{44+i}, 0x3f803f80")
    e("s_nop 1")
    for s in range(18):
        a.wait(vm=a.vm_n(xl[s]))
        cin = "0" if s == 0 else vr(48, 4)
        e(f"v_mfma_f32_16x16x32_bf16 {vr(48,4)}, {vr(44,4)}, {vr(V_XR+4*s,4)}, {cin}")
    stamp(early=True)
    ring_ops = [op for n in range(4) for op in dma_ops(n, None)]
    e("s_nop 7")
    e(f"v_mul_f32 v34, 0x3ae38e39, v48")
    e("v_cvt_pk_bf16_f32 v35, v34, v34")
    e("v_lshlrev_b32 v36, 16, v35")
    e("v_mov_b32 v37, v36")
    e("v_sub_f32 v34, v34, v36")
    e("v_sub_f32 v37, 0, v36")
    e("s_mov_b32 s46, 0x00003f80")
    e("s_mov_b32 s47, 0x3f800000")
    for k in range(72):
        d = V_D + 2 * k
        e(f"v_dot2_f32_bf16 v{d}, v{V_XR+k}, s46, v37")
        e(f"v_dot2_f32_bf16 v{d+1}, v{V_XR+k}, s47, v37")
        if k % 3 == 1 and ring_ops:
            ring_ops.pop(0)()
    assert not ring_ops
    e(f"v_pk_mul_f32 {vr(38,2)}, {vr(V_D,2)}, {vr(V_D,2)}")
    e(f"v_pk_mul_f32 {vr(2,2)}, {vr(V_D+2,2)}, {vr(V_D+2,2)}")
    for k in range(2, 72):
        d = V_D + 2 * k
        r = 38 if k % 2 == 0 else 2
        e(f"v_pk_fma_f32 {vr(r,2)}, {vr(d,2)}, {vr(d,2)}, {vr(r,2)}")
    e(f"v_pk_add_f32 {vr(38,2)}, {vr(38,2)}, {vr(2,2)}")
    e("v_add_f32 v38, v38, v39")
    e("v_mov_b32 v39, v38")
    e("s_nop 1")
    e("v_permlane32_swap_b32 v38, v39")
    e("v_add_f32 v38, v38, v39")
    e("v_mov_b32 v39, v38")
    e("s_nop 1")
    e("v_permlane16_swap_b32 v38, v39")
    e("v_add_f32 v38, v38, v39")
    e("v_mul_f32 v38, 0x3ae38e39, v38")
    e("v_fma_f32 v38, -v34, v34, v38")
    e("v_cvt_pk_bf16_f32 v38, v38, v38")
    e("v_lshlrev_b32 v38, 16, v38")
    e("v_add_f32 v38, 0x3727c5ac, v38")
    e("v_cvt_pk_bf16_f32 v38, v38, v38")
    e("v_lshlrev_b32 v38, 16, v38")
    e("v_sqrt_f32 v38, v38")
    e("s_nop 0")
    e("v_cvt_pk_bf16_f32 v38, v38, v38")
    e("v_lshlrev_b32 v38, 16, v38")
    e("v_rcp_f32 v38, v38")
    e("s_nop 0")
    e("v_mov_b32 v2, v36")
    e("v_mov_b32 v3, v38")
    e("v_mul_f32 v38, 0xbfb8aa3b, v38")
    e("v_mov_b32 v39, v38")
    e("v_and_b32 v41, 63, v40")
    e("v_lshlrev_b32 v41, 3, v41")
    e(f"v_add_u32 v41, {STATS}, v41")
    e(f"ds_write_b64 v41, {vr(2,2)}")
    e("v_mov_b32 v2, 0")
    e(f"v_mov_b32 v3, {S3WORD}")
    e("ds_write_b32 v3, v2")
    e("s_cmp_eq_u32 s44, 0")
    e("s_cbranch_scc1 M_TABFREE")
    e("s_barrier")
    a.label("M_TABFREE")
    e(f"s_lshl_b32 s{S_TMP0}, s{S_WV}, 10")
    e(f"v_add_u32 v41, s{S_TMP0}, v{V_L16}")
    e(f"v_add_u32 v42, 0x10000, v41")
    for s in range(18):
        for k in range(4 * s, 4 * s + 4):
            d = V_D + 2 * k
            e(f"v_pk_mul_f32 {vr(d,2)}, {vr(d,2)}, {vr(38,2)}")
        for k in range(4 * s, 4 * s + 4):
            d = V_D + 2 * k
            e(f"v_cvt_pk_bf16_f32 v{V_D+8*s+(k-4*s)}, v{d}, v{d+1}")
        off = s * 4096
        if off < 65536:
            e(f"ds_write_b128 v41, {vr(V_D+8*s,4)} offset:{off}")
        else:
            e(f"ds_write_b128 v42, {vr(V_D+8*s,4)} offset:{off-65536}")
    e("v_mov_b32 v40, 0")
    e(f"s_lshl_b32 s{S_TMP0}, s{S_T}, 3")
    e(f"s_add_u32 s{S_TMP1}, s{S_TMP0}, s{S_U0}")
    e(f"s_lshl_b32 s{S_TMP1}, s{S_TMP1}, 3")
    e(f"s_add_u32 s{S_TMP1}, s{S_TMP1}, s{S_J}")
    e(f"s_lshl_b32 s{S_TMP1}, s{S_TMP1}, 2")
    e(f"s_add_u32 s{S_F3A}, s{S_TMP1}, {WS_FLAG3}")
    e(f"s_add_u32 s{S_TMP1}, s{S_TMP0}, s{S_U1}")
    e(f"s_lshl_b32 s{S_TMP1}, s{S_TMP1}, 3")
    e(f"s_add_u32 s{S_TMP1}, s{S_TMP1}, s{S_J}")
    e(f"s_lshl_b32 s{S_TMP1}, s{S_TMP1}, 2")
    e(f"s_add_u32 s{S_F3B}, s{S_TMP1}, {WS_FLAG3}")
    e(f"s_lshl_b32 s{S_TMP1}, s{S_T}, 2")
    e(f"s_add_u32 s{S_TMP1}, s{S_TMP1}, s{S_WV}")
    e(f"s_lshl_b32 s{S_TMP1}, s{S_TMP1}, 3")
    e(f"s_add_u32 s{S_TMP1}, s{S_TMP1}, s{S_J}")
    e(f"s_lshl_b32 s{S_TMP1}, s{S_TMP1}, 2")
    e(f"s_add_u32 s{S_F3X}, s{S_TMP1}, {WS_FLAG3X}")
    e("s_mov_b64 exec, 1")
    for sg in (S_F3A, S_F3B, S_F3X):
        a.vmem(f"buffer_store_dword v40, v40, s[{S_WS}:{S_WS+3}], s{sg} offen{SC1}")
    e("s_mov_b64 exec, -1")
    for i in range(4):
        e(f"v_mov_b32 v{44+i}, -1")
    e(f"v_lshrrev_b32 v48, 3, v{L}")
    e(f"v_and_b32 v49, 7, v{L}")
    e(f"s_lshl_b32 s{S_TMP0}, s{S_J}, 6")
    e(f"s_lshl_b32 s{S_TMP1}, s{S_WV}, 4")
    e(f"s_add_u32 s{S_TMP0}, s{S_TMP0}, s{S_TMP1}")
    e(f"v_add_u32 v48, s{S_TMP0}, v48")
    e("v_lshlrev_b32 v48, 12, v48")
    e("v_lshl_add_u32 v48, v49, 4, v48")
    e(f"s_lshl_b32 s{S_TMP2}, s{S_T}, 7")
    e(f"s_add_u32 s{S_TMP2}, s{S_TMP2}, {WS_YT}")
    e(f"s_add_u32 s{S_TMP1}, s{S_TMP2}, {8*4096}")
    a.vmem(f"buffer_store_dwordx4 {vr(44,4)}, v48, s[{S_WS}:{S_WS+3}], s{S_TMP2} offen{SC1}")
    a.vmem(f"buffer_store_dwordx4 {vr(44,4)}, v48, s[{S_WS}:{S_WS+3}], s{S_TMP1} offen{SC1}")
    e(f"s_cmp_lg_u32 s{S_WV}, 3")
    e("s_cbranch_scc1 M_NOCLR")
    e(f"v_lshrrev_b32 v48, 1, v{L}")
    e(f"v_and_b32 v49, 1, v{L}")
    e(f"s_and_b32 s{S_TMP0}, s{S_J}, 1")
    e(f"s_lshl_b32 s{S_TMP0}, s{S_TMP0}, 5")
    e(f"s_add_u32 s{S_TMP0}, s{S_TMP0}, 512")
    e(f"v_add_u32 v48, s{S_TMP0}, v48")
    e("v_lshlrev_b32 v48, 12, v48")
    e("v_lshl_add_u32 v48, v49, 4, v48")
    e(f"s_lshr_b32 s{S_TMP0}, s{S_J}, 1")
    e(f"s_lshl_b32 s{S_TMP0}, s{S_TMP0}, 5")
    e(f"s_add_u32 s{S_TMP0}, s{S_TMP0}, s{S_TMP2}")
    a.vmem(f"buffer_store_dwordx4 {vr(44,4)}, v48, s[{S_WS}:{S_WS+3}], s{S_TMP0} offen{SC1}", counted=False)
    a.label("M_NOCLR")
    if opt.get('aearly', False):
        a.wait(vm=a.vm_n(dma_seq[0]))
        for x in a_reads(0):
            e(x)
    a.wait(lgkm=0)
    e("s_barrier")
    if dbg:
        e(f"v_mov_b32 v{V_STAMP}, v43")
    stamp()

    def bread_str(s, tt):
        idx = 4 * s + tt
        off = idx * 1024
        if off < 65536:
            return f"ds_read_b128 {Breg(s, tt)}, v{V_L16} offset:{off}"
        return f"ds_read_b128 {Breg(s, tt)}, v{V_L16H} offset:{off-65536}"

    a.c("transposed publish of the normalised activations: 16-channel blocks")
    e(f"v_and_b32 v2, 15, v{L}")
    e(f"v_lshrrev_b32 v3, 4, v{L}")
    e("v_lshrrev_b32 v52, 2, v2")
    e("v_and_b32 v53, 3, v2")
    e("v_lshrrev_b32 v54, 1, v3")
    e("v_lshlrev_b32 v54, 10, v54")
    e("v_lshrrev_b32 v55, 1, v53")
    e("v_lshl_add_u32 v54, v55, 8, v54")
    e("v_and_b32 v55, 1, v3")
    e("v_lshl_add_u32 v55, v55, 3, v52")
    e("v_lshl_add_u32 v54, v55, 4, v54")
    e("v_and_b32 v55, 1, v53")
    e("v_lshl_add_u32 v54, v55, 3, v54")
    e("v_lshlrev_b32 v55, 12, v2")
    e("v_lshl_add_u32 v55, v3, 4, v55")
    e(f"s_lshl_b32 s{S_TMP0}, s{S_T}, 7")
    e(f"v_add_u32 v55, s{S_TMP0}, v55")

    def ut_block(dst):
        e(f"s_lshr_b32 s{S_TMP2}, s{S_TMP1}, 1")
        e(f"s_add_u32 s{S_TMP2}, s{S_TMP2}, 18")
        e(f"s_sub_u32 s{S_TMP2}, s{S_TMP2}, s{S_ROT}")
        e(f"s_cmp_ge_u32 s{S_TMP2}, 18")
        e(f"s_cselect_b32 s{S_TMP0}, 18, 0")
        e(f"s_sub_u32 s{S_TMP2}, s{S_TMP2}, s{S_TMP0}")
        e(f"s_lshl_b32 s{S_TMP2}, s{S_TMP2}, 12")
        e(f"s_and_b32 s{S_TMP0}, s{S_TMP1}, 1")
        e(f"s_lshl_b32 s{S_TMP0}, s{S_TMP0}, 9")
        e(f"s_add_u32 s{S_TMP2}, s{S_TMP2}, s{S_TMP0}")
        e(f"v_add_u32 v56, s{S_TMP2}, v54")
        for h2 in range(2):
            for p in range(2):
                e(f"ds_read_b64_tr_b16 {vr(dst+4*h2+2*p,2)}, v56 offset:{h2*2048+p*64}")
        e(f"s_lshl_b32 s{S_TMP2}, s{S_TMP1}, 16")
        a.wait(lgkm=0)

    e(f"s_lshl_b32 s{S_TMP1}, s{S_WV}, 3")
    e(f"s_add_u32 s{S_TMP1}, s{S_TMP1}, s{S_J}")
    ut_block(V_T)
    e(f"s_mov_b32 s{S_UT}, s{S_TMP2}")

    def ut_store(h2):
        def f():
            a.vmem(f"buffer_store_dwordx4 {vr(V_T+4*h2,4)}, v55, s[{S_WS}:{S_WS+3}], s{S_UT} offen offset:{64*h2}{SC1}")
        return f
    e(f"s_cmp_lg_u32 s{S_WV}, 3")
    e("s_cbranch_scc1 M_NOUT2")
    e(f"s_cmp_ge_u32 s{S_J}, 4")
    e("s_cbranch_scc1 M_NOUT2")
    e(f"s_add_u32 s{S_TMP1}, s{S_J}, 32")
    ut_block(V_PK)
    for h2 in range(2):
        a.vmem(f"buffer_store_dwordx4 {vr(V_PK+4*h2,4)}, v55, s[{S_WS}:{S_WS+3}], s{S_TMP2} offen offset:{64*h2}{SC1}", counted=False)
    a.label("M_NOUT2")
    e(f"s_mov_b32 s{S_NL2E}, 0xbfb8aa3b")

    filler_left = [1]

    STEP_GAP = "@gap"
    STEP_BARRIER = "@barrier"
    want_barrier = [False]
    need_lds = [False]
    trailing_ds = [0]

    def emit_step(n, wk, filler, bjit, post, rate=None):
        st = steps[n]
        defer = (n == 44)
        vmn = a.vm_n(dma_seq[n + 1]) if (n + 1 < NS and not defer) else None
        lg = 0 if (want_barrier[0] or need_lds[0] or not opt.get('lgk', True)) else min(15, trailing_ds[0])
        need_lds[0] = False
        trailing_ds[0] = 0
        a.wait(vm=vmn, lgkm=lg)
        if want_barrier[0]:
            e("s_barrier")
            want_barrier[0] = False
        ds_slots = []
        if n + 1 < NS and not defer:
            ds_slots += a_reads(n + 1)
        ds_slots += bjit
        dma = []
        for (mm, q) in plan[n]:
            ops = dma_ops(mm, wk)
            if q == 0:
                dma.append(ops[0])
            dma.append(ops[1 + q])
        if st.kind == 'F':
            b = 0
            mf = [(f, tt) for f in range(4) for tt in range(4)]
            s = st.s
        else:
            b = 1
            mf = [(f, tt) for f in range(2) for tt in range(4)]
            s = 9 * wk + st.s
        first = (st.s == 0)
        nm = len(mf)
        side = [[] for _ in range(nm)]
        per = -(-len(ds_slots) // min(nm, 12 if nm == 16 else nm))
        k = 0
        for x in ds_slots:
            side[k // per].append(x)
            k += 1
        if dma:
            pos = [nm // 2 - 1 + (i * (nm - nm // 2)) // len(dma) for i in range(len(dma))]
            for p, op in zip(pos, dma):
                side[min(p, nm - 1)].append(op)
        nfill = (rate if rate is not None else -(-len(filler) // max(1, filler_left[0]))) if filler else 0
        late = list(post)
        any_ds_post = True
        gap = False
        for m, (f, tt) in enumerate(mf):
            if st.kind == 'F' and st.g == 1 and st.r == 1:
                c = acc_g1r1(f, tt)
            else:
                c = acc(b, f, tt if st.kind == 'F' else tt ^ (2 * wk))
            cin = "0" if first else vr(c, 4)
            e(f"v_mfma_f32_16x16x32_bf16 {vr(c,4)}, {vr(Areg(n % 2, f),4)}, {Breg(s, tt)}, {cin}")
            for x in side[m]:
                if callable(x):
                    x()
                else:
                    e(x)
                    if x.startswith("ds_"):
                        trailing_ds[0] = 0
            want = (nfill * (m + 1)) // nm - (nfill * m) // nm
            for _ in range(want):
                if filler and not gap:
                    x = filler[0]
                    if isinstance(x, tuple) and x[0] == "late" and m < 4:
                        break
                    filler.pop(0)
                    if x is STEP_GAP:
                        gap = True
                        need_lds[0] = True
                    elif x is STEP_BARRIER:
                        gap = True
                        want_barrier[0] = True
                    elif isinstance(x, tuple) and x[0] == "late":
                        e(x[1])
                        trailing_ds[0] += 1
                    elif isinstance(x, tuple):
                        late.append(x[1])
                        gap = True
                    elif callable(x):
                        x()
                    else:
                        e(x)
                        if x.startswith("ds_"):
                            trailing_ds[0] += 1
                            if x.startswith("ds_read"):
                                need_lds[0] = True
        for x in late:
            x()
        if late:
            need_lds[0] = need_lds[0] or any_ds_post
        filler_left[0] -= 1

    def run_steps(ns, wk, filler, bjit_fn=None, post=None, rate=None, drain=True):
        filler_left[0] = max(1, len(ns) - 2)
        need_lds[0] = True
        for n in ns:
            if dbg == "s" and (n % 3 == 0) and n < 45 and steps[n].kind == 'F':
                stamp()
            if dbg == "t" and n >= 72 and (n % 2 == 0 or n >= 84):
                stamp()
            if dbg == "u" and 27 <= n < 45:
                stamp()
            emit_step(n, wk, filler, bjit_fn(n) if bjit_fn else [], (post or {}).get(n, []), rate)
        assert not (drain and filler), len(filler)

    def run_plain(F):
        for x in F:
            if callable(x):
                x()
            else:
                e(x)

    def slot_addr(dst, kexpr_setup):
        kexpr_setup()
        e(f"s_add_u32 s{S_TMP0}, s{S_TMP0}, 18")
        e(f"s_sub_u32 s{S_TMP0}, s{S_TMP0}, s{S_ROT}")
        e(f"s_cmp_ge_u32 s{S_TMP0}, 18")
        e(f"s_cselect_b32 s{S_TMP1}, 18, 0")
        e(f"s_sub_u32 s{S_TMP0}, s{S_TMP0}, s{S_TMP1}")
        e(f"s_lshl_b32 s{S_TMP0}, s{S_TMP0}, 12")
        e(f"v_add_u32 v{dst}, s{S_TMP0}, v{V_L16}")

    def set_exh_unit(su):
        slot_addr(V_EXH, lambda: e(f"s_lshl_b32 s{S_TMP0}, s{su}, 1"))
        slot_addr(V_EXH2, lambda: (e(f"s_lshl_b32 s{S_TMP0}, s{su}, 1"), e(f"s_add_u32 s{S_TMP0}, s{S_TMP0}, 1")))

    def unit_epilogue(g, b, su):
        F = []
        k = 0
        for sg in range(2):
            for tt in range(4):
                pk = V_PK + 4 * (k % 2)
                if g == 1:
                    for h in range(2):
                        F += silu_chain([acc(b, 2 * sg + h, tt) + x for x in range(4)], V_T + 4 * h)
                for h in range(2):
                    c = acc(b, 2 * sg + h, tt)
                    F.append(f"v_cvt_pk_bf16_f32 v{pk+2*h}, v{c}, v{c+1}")
                    F.append(f"v_cvt_pk_bf16_f32 v{pk+2*h+1}, v{c+2}, v{c+3}")
                if g == 1:
                    F.append(f"ds_write_b128 v{V_EXH if sg == 0 else V_EXH2}, {vr(pk,4)} offset:{tt*1024}")
                else:
                    def st(sg=sg, tt=tt, pk=pk):
                        e(f"s_add_u32 s{S_TMP0}, s{su}, {(sg*4+tt)*8192}")
                        a.vmem(f"buffer_store_dwordx4 {vr(pk,4)}, v{V_PART}, s[{S_WS}:{S_WS+3}], s{S_TMP0} offen{SC1}")
                    F.append(("post", st))
                k += 1
        return F

    def split_phase(n0, tag, filler, rate, drain):
        e(f"s_cmp_eq_u32 s{S_WK}, 0")
        e(f"s_cbranch_scc0 {tag}_WK1")
        vm_save = a.vm
        seq_save = dict(dma_seq)
        rest = None
        for wk in (0, 1):
            if wk == 0:
                nst_w = nst[0]
            if wk == 1:
                nst[0] = nst_w
                a.label(f"{tag}_WK1")
                a.vm = vm_save
                dma_seq.clear()
                dma_seq.update(seq_save)
            F = list(filler)
            run_steps(list(range(n0, n0 + 9)), wk, F, rate=rate, drain=drain)
            rest = F
            if wk == 0:
                e(f"s_branch {tag}_JOIN")
        a.label(f"{tag}_JOIN")
        return rest

    def split_finish(g):
        b = 1
        F = [("late", f"ds_write_b128 v{V_TW}, {vr(acc(b,f,2+k),4)} offset:{(f*2+k)*1024}") for f in range(2) for k in range(2)]
        F.append(STEP_BARRIER)
        R = V_X0
        for f in range(2):
            for k in range(2):
                F.append(f"ds_read_b128 {vr(R + 4*k, 4)}, v{V_TR} offset:{(f*2+k)*1024}")
            F.append(STEP_GAP)
            for k in range(2):
                for x in range(4):
                    F.append(f"v_add_f32 v{acc(b,f,k)+x}, v{acc(b,f,k)+x}, v{R+4*k+x}")
            F.append(STEP_GAP)
        for k in range(2):
            pk = V_PK + 4 * k
            if g == 1:
                for f in range(2):
                    F += silu_chain([acc(b, f, k) + x for x in range(4)], V_T + 4 * f)
            for f in range(2):
                for h in range(2):
                    F.append(f"v_cvt_pk_bf16_f32 v{pk+2*f+h}, v{acc(b,f,k)+2*h}, v{acc(b,f,k)+2*h+1}")
            if g == 1:
                F.append(f"ds_write_b128 v{V_EXS}, {vr(pk,4)} offset:{k*1024}")
            else:
                def st(k=k, pk=pk):
                    e(f"s_add_u32 s{S_TMP0}, s{S_PUS}, {k*8192}")
                    a.vmem(f"buffer_store_dwordx4 {vr(pk,4)}, v{V_PART}, s[{S_WS}:{S_WS+3}], s{S_TMP0} offen{SC1}")
                F.append(("post", st))
        return F

    HP = V_ACC[1] + 32

    def pack_round0():
        F = []
        for sg in range(2):
            for tt in range(4):
                d = HP + 4 * (sg * 4 + tt)
                for h in range(2):
                    c = acc(0, 2 * sg + h, tt)
                    F.append(f"v_cvt_pk_bf16_f32 v{d+2*h}, v{c}, v{c+1}")
                    F.append(f"v_cvt_pk_bf16_f32 v{d+2*h+1}, v{c+2}, v{c+3}")
        return F

    def silu_items():
        items = []
        for sg in range(2):
            for tt in range(4):
                pk = V_PK + 4 * (tt % 2)
                c0, c1 = acc(0, 2 * sg, tt), acc(0, 2 * sg + 1, tt)
                F = silu_chain([c0 + x for x in range(4)], V_T) + silu_chain([c1 + x for x in range(4)], V_T + 4)
                for h, c in enumerate((c0, c1)):
                    F.append(f"v_cvt_pk_bf16_f32 v{pk+2*h}, v{c}, v{c+1}")
                    F.append(f"v_cvt_pk_bf16_f32 v{pk+2*h+1}, v{c+2}, v{c+3}")
                F.append(f"ds_write_b128 v{V_EXH if sg == 0 else V_EXH2}, {vr(pk,4)} offset:{tt*1024}")
                items.append(F)
        return items

    def silu_exposed():
        C = []
        k = 0
        for sg in range(2):
            for tt in range(4):
                pk = V_PK + 4 * (k % 2)
                t = V_ACC[0] + 32 + 8 * k if k < 4 else V_ACC[1] + 8 * (k - 4)
                src = [acc_g1r1(2 * sg, tt), acc_g1r1(2 * sg + 1, tt)]
                for h in range(2):
                    for x in range(4):
                        C.append(f"v_exp_f32 v{t+4*h+x}, v{src[h]+x}")
                for x in range(0, 8, 2):
                    C.append(f"v_pk_add_f32 {vr(t+x,2)}, {vr(t+x,2)}, 1.0 op_sel_hi:[1,0]")
                for x in range(8):
                    C.append(f"v_rcp_f32 v{t+x}, v{t+x}")
                for h in range(2):
                    for x in (0, 2):
                        C.append(f"v_pk_mul_f32 {vr(t+4*h+x,2)}, {vr(t+4*h+x,2)}, {vr(src[h]+x,2)}")
                for x in range(4):
                    C.append(f"v_cvt_pk_bf16_f32 v{pk+x}, v{t+2*x}, v{t+2*x+1}")
                C.append(f"ds_write_b128 v{V_EXH if sg == 0 else V_EXH2}, {vr(pk,4)} offset:{tt*1024}")
                k += 1
        for x in schedule(C, dist=3, window=40):
            e(x)

    def bjit(n0):
        def f(n):
            i = n - n0
            return [bread_str(i + 1, tt) for tt in range(4)] if i + 1 < 18 else []
        return f

    ut_store(0)()
    ut_store(1)()
    for tt in range(4):
        e(bread_str(0, tt))
    if not opt.get('aearly', False):
        a.wait(vm=a.vm_n(dma_seq[0]))
        for x in a_reads(0):
            e(x)
    stamp()
    a.c("GEMM1 round 0")
    run_steps(list(range(0, 18)), None, [], bjit(0), post={})
    a.wait(lgkm=0)
    e("s_barrier")
    e(f"s_cmp_lg_u32 s{S_WV}, 0")
    e("s_cbranch_scc1 M_NOARR1")
    e(f"s_and_b32 s{S_TMP0}, s2, 3")
    e(f"s_lshl_b32 s{S_TMP0}, s{S_TMP0}, 6")
    e("v_mov_b32 v58, 1")
    e("v_mov_b32 v59, 0")
    e("s_mov_b64 exec, 1")
    a.vmem(f"buffer_atomic_add v58, v59, s[{S_DBG}:{S_DBG+3}], s{S_TMP0} offen{SC1}", counted=False)
    e("s_mov_b64 exec, -1")
    a.label("M_NOARR1")
    stamp()
    set_exh_unit(S_U0)
    slot_addr(V_EXS, lambda: e(f"s_add_u32 s{S_TMP0}, s{S_WN}, 16"))
    e(f"s_lshl_b32 s{S_TMP1}, s{S_WK}, 11")
    e(f"v_add_u32 v{V_EXS}, s{S_TMP1}, v{V_EXS}")
    a.c("GEMM1 split unit")
    items = silu_items()
    split_phase(18, "M_G1S", [x for it in items[:4] for x in it], None, True)
    stamp()
    a.c("GEMM1 round 1")
    sf = split_finish(1)
    bi = sf.index(STEP_BARRIER)
    wr, rest = sf[:bi], sf[bi+1:]
    g1 = rest.index(STEP_GAP)
    rd0, rest = rest[:g1], rest[g1+1:]
    g2 = rest.index(STEP_GAP)
    ad0, rest = rest[:g2], rest[g2+1:]
    g3 = rest.index(STEP_GAP)
    rd1, rest = rest[:g3], rest[g3+1:]
    g4 = rest.index(STEP_GAP)
    ad1, fin1 = rest[:g4], rest[g4+1:]
    h4 = len(items[4]) // 2
    Q = (wr[:2] + items[4][:h4] + [STEP_GAP] + wr[2:] + items[4][h4:] + [STEP_BARRIER] + items[5] + rd0 + items[6][:8] + [STEP_GAP]
         + ad0 + rd1 + items[6][8:] + [STEP_GAP] + ad1 + items[7] + fin1)
    run_steps(list(range(27, 45)), None, Q, rate=opt.get('g1rate', 16))
    stamp()
    set_exh_unit(S_U1)
    e("s_nop 3")
    silu_exposed()
    a.wait(vm=a.vm_n(dma_seq[45]))
    for x in a_reads(45):
        e(x)
    a.wait(lgkm=0)
    e("s_barrier")
    for tt in range(4):
        e(bread_str(0, tt))
    stamp()
    a.c("GEMM2 round 0")
    if DEEP0 < NS:
        e(f"s_lshl_b32 s{S_XB}, s{S_WV}, 13")
        e(f"s_sub_u32 s{S_TMP0}, s{S_XB}, s{S_RB}")
        for f in range(4):
            e(f"v_add_u32 v{V_AFX+f}, s{S_TMP0}, v{V_AF2+f}")

    def poll_issue():
        e(f"v_lshlrev_b32 v61, 6, v{L}")
        e("v_min_u32 v61, 192, v61")
        a.vmem(f"buffer_load_dword v62, v61, s[{S_DBG}:{S_DBG+3}], 0 offen{SC1}")
    run_steps(list(range(45, 63)), None, [], bjit(45), post={50: [poll_issue]})
    stamp()
    a.c("GEMM2 split unit")
    split_phase(63, "M_G2S", pack_round0(), None, True)
    stamp()
    a.c("GEMM2 round 1")
    useq = [None]

    def flag_store(sg):
        def f():
            e("v_mov_b32 v58, 1")
            e("v_mov_b32 v59, 0")
            e("s_mov_b64 exec, 1")
            a.vmem(f"buffer_store_dword v58, v59, s[{S_WS}:{S_WS+3}], s{sg} offen{SC1}")
            e("s_mov_b64 exec, -1")
        return f

    last_store = [None]

    def packed_store(k):
        def f():
            e(f"s_add_u32 s{S_TMP0}, s{S_PU0}, {k*8192}")
            if not opt.get('nostore'):
                last_store[0] = a.vmem(f"buffer_store_dwordx4 {vr(HP+4*k,4)}, v{V_PART}, s[{S_WS}:{S_WS+3}], s{S_TMP0} offen{PSC}")
        return f

    def early_flags():
        if last_store[0] is not None:
            a.wait(vm=a.vm_n(last_store[0]))
        flag_store(S_F3A)()
        flag_store(S_F3X)()

    def u_loads():
        e("v_cmp_gt_u32 vcc, 64, v62")
        e(f"s_mov_b32 s{S_TMP1}, 0")
        e("s_nop 3")
        e("s_cbranch_vccz M_UT_READY")
        a.label("M_SPIN1")
        e(f"buffer_load_dword v62, v61, s[{S_DBG}:{S_DBG+3}], 0 offen{SC1}")
        e("s_waitcnt vmcnt(0)")
        e("v_cmp_gt_u32 vcc, 64, v62")
        e(f"s_add_u32 s{S_TMP1}, s{S_TMP1}, 1")
        e(f"s_cmp_ge_u32 s{S_TMP1}, {SPIN_LIMIT}")
        e("s_cbranch_scc1 M_UT_READY")
        e("s_cbranch_vccz M_UT_READY")
        e("s_sleep 2")
        e("s_branch M_SPIN1")
        a.label("M_UT_READY")
        e(f"s_min_u32 s{S_TMP1}, s{S_CH}, 575")
        e(f"s_lshl_b32 s{S_TMP1}, s{S_TMP1}, 12")
        for kq in range(4):
            useq[0] = a.vmem(f"buffer_load_dwordx4 {vr(176+4*kq,4)}, v{V_L16}, s[{S_WS}:{S_WS+3}], s{S_TMP1} offen offset:{kq*1024}{SC1}")
    S_OUT, S_DSK = 8, 48
    X, D, ST, GP, Y = 192, 204, 216, 232, 244
    VX0, VX1, VD0, VD1 = 10, 11, 12, 13

    def final_operand_loads():
        e(f"v_and_b32 v2, 15, v{L}")
        e(f"v_lshrrev_b32 v3, 4, v{L}")
        e("v_and_b32 v7, 1, v3")
        e("v_lshlrev_b32 v7, 4, v7")
        e("v_lshrrev_b32 v3, 1, v3")
        e("v_lshl_add_u32 v3, v3, 3, v7")
        e(f"s_lshl_b32 s{S_TMP0}, s{S_WV}, 4")
        e(f"v_add_u32 v5, s{S_TMP0}, v2")
        e(f"s_lshr_b32 s{S_TMP1}, s{S_J}, 1")
        e(f"s_lshl_b32 s{S_TMP1}, s{S_TMP1}, 4")
        e(f"v_add_u32 v6, s{S_TMP1}, v2")
        e(f"s_lshl_b32 s{S_TMP2}, s{S_T}, 6")
        e(f"v_add_u32 v{VX0}, s{S_TMP2}, v5")
        e(f"v_mul_u32_u24 v{VX0}, 1152, v{VX0}")
        e(f"s_lshl_b32 s{S_TMP0}, s{S_J}, 6")
        e(f"v_add_u32 v{VD0}, s{S_TMP0}, v3")
        e(f"v_lshlrev_b32 v{VD0}, 1, v{VD0}")
        e(f"v_add_u32 v{VX0}, v{VD0}, v{VX0}")
        e(f"v_add_u32 v{VX1}, s{S_TMP2}, v6")
        e(f"v_mul_u32_u24 v{VX1}, 1152, v{VX1}")
        e(f"s_and_b32 s{S_TMP0}, s{S_J}, 1")
        e(f"s_lshl_b32 s{S_TMP0}, s{S_TMP0}, 5")
        e(f"s_add_u32 s{S_TMP0}, s{S_TMP0}, 512")
        e(f"v_add_u32 v{VD1}, s{S_TMP0}, v3")
        e(f"v_lshlrev_b32 v{VD1}, 1, v{VD1}")
        e(f"v_add_u32 v{VX1}, v{VD1}, v{VX1}")
        for pc, (vx, vd, off) in enumerate(((VX0, VD0, 0), (VX0, VD0, 64), (VX1, VD1, 0))):
            e(f"buffer_load_dwordx4 {vr(X+4*pc,4)}, v{vx}, s[{S_X}:{S_X+3}], 0 offen offset:{off}")
            e(f"buffer_load_dwordx4 {vr(D+4*pc,4)}, v{vd}, s[{S_DSK}:{S_DSK+3}], 0 offen offset:{off}")
        e("v_lshlrev_b32 v5, 3, v5")
        e("v_lshlrev_b32 v6, 3, v6")
        e(f"v_add_u32 v5, {STATS}, v5")
        e(f"v_add_u32 v6, {STATS}, v6")
        e(f"ds_read_b64 {vr(ST,2)}, v5")
        e(f"ds_read_b64 {vr(ST+2,2)}, v6")

    def tail_descriptors():
        srd(e, S_OUT, 98, 2359296)
    if opt.get('burst'):
        post = {72: [packed_store(k) for k in range(4)], 73: [packed_store(k) for k in range(4, 8)]}
    else:
        at = opt.get('stat', [72, 74, 76, 78, 80, 82, 84, 86])
        post = {}
        for k in range(8):
            post.setdefault(at[k], []).append(packed_store(k))
    post.setdefault(opt.get('flat', 89), []).append(early_flags)
    post.setdefault(74, []).append(tail_descriptors)
    post.setdefault(87, []).append(u_loads)

    e(f"s_mul_i32 s{S_LDS}, s{S_WV}, {CV.KR_BYTES}")
    e(f"s_mul_i32 s{S_UB}, s{S_WV}, {CV.U_BYTES}")
    e(f"s_add_u32 s{S_UB}, s{S_UB}, 45056")
    F2 = split_finish(2)
    run_steps(list(range(72, 81)), None, F2, post=post, rate=10)
    FX = [STEP_GAP if x == CV.GAP else x for x in CV.expansion(L, S_LDS, S_UB, S_PAR, 60, 4, 10, 160, 172, 34)]
    if opt.get('noexp'):
        FX = []
    run_steps(list(range(81, 88)), None, FX, post=post, rate=26)
    run_steps(list(range(88, 90)), None, [], post=post)
    stamp()
    e("s_nop 7")
    if not opt.get('skipr1'):
        run_plain([x[1] if isinstance(x, tuple) else x for x in unit_epilogue(2, 0, S_PU1)])
    stamp()

    if dbg:
        e(f"v_mov_b32 v222, v{V_STAMP}")
        stamp_reg[0] = 222

    S_Y0, S_Y1, S_YX = 76, 77, 78
    YR = 164
    ylab = [0]

    def y_loads(first):
        if first:
            e(f"v_lshrrev_b32 v2, 1, v{L}")
            e(f"v_and_b32 v3, 1, v{L}")
            e(f"s_lshl_b32 s{S_TMP0}, s{S_J}, 6")
            e(f"v_add_u32 v6, s{S_TMP0}, v2")
            e("v_lshlrev_b32 v6, 12, v6")
            e("v_lshl_add_u32 v6, v3, 4, v6")
            e(f"s_and_b32 s{S_TMP0}, s{S_J}, 1")
            e(f"s_lshl_b32 s{S_TMP0}, s{S_TMP0}, 5")
            e(f"s_add_u32 s{S_TMP0}, s{S_TMP0}, 512")
            e(f"v_add_u32 v7, s{S_TMP0}, v2")
            e("v_lshlrev_b32 v7, 12, v7")
            e("v_lshl_add_u32 v7, v3, 4, v7")
            e(f"s_lshl_b32 s{S_TMP2}, s{S_T}, 7")
            e(f"s_add_u32 s{S_TMP2}, s{S_TMP2}, {WS_YT}")
            e(f"s_lshl_b32 s{S_TMP0}, s{S_WV}, 5")
            e(f"s_add_u32 s{S_Y0}, s{S_TMP2}, s{S_TMP0}")
            e(f"s_add_u32 s{S_Y1}, s{S_Y0}, {32*4096}")
            e(f"s_lshr_b32 s{S_TMP0}, s{S_J}, 1")
            e(f"s_lshl_b32 s{S_TMP0}, s{S_TMP0}, 5")
            e(f"s_add_u32 s{S_YX}, s{S_TMP2}, s{S_TMP0}")
            for k in range(4):
                e(f"v_mov_b32 v{YR+8+k}, 0")
        if first == "setup":
            return
        e(f"buffer_load_dwordx4 {vr(YR,4)}, v6, s[{S_WS}:{S_WS+3}], s{S_Y0} offen{SC1}")
        e(f"buffer_load_dwordx4 {vr(YR+4,4)}, v6, s[{S_WS}:{S_WS+3}], s{S_Y1} offen{SC1}")
        ylab[0] += 1
        e(f"s_cmp_lg_u32 s{S_WV}, 3")
        e(f"s_cbranch_scc1 M_YL{ylab[0]}")
        e(f"buffer_load_dwordx4 {vr(YR+8,4)}, v7, s[{S_WS}:{S_WS+3}], s{S_YX} offen{SC1}")
        a.label(f"M_YL{ylab[0]}")

    e(f"s_cmp_eq_u32 s{S_ROLE}, 0")
    e("s_cbranch_scc1 M_REDUCE")
    S_PB, S_PC, S_EARLY = 72, 74, 75
    V_PL = 9
    def preg(i, jj):
        return ar(128 + 4 * (8 * i + jj), 4)

    def issue_piece(i):
        if i < 2:
            e(f"s_lshl_b32 s{S_PC}, s{S_J}, 3")
            e(f"s_add_u32 s{S_PC}, s{S_PC}, s{S_WV}")
            if i:
                e(f"s_add_u32 s{S_PC}, s{S_PC}, 4")
        else:
            e(f"s_and_b32 s{S_TMP0}, s{S_J}, 1")
            e(f"s_lshl_b32 s{S_TMP0}, s{S_TMP0}, 2")
            e(f"s_lshr_b32 s{S_TMP1}, s{S_J}, 1")
            e(f"s_add_u32 s{S_PC}, s{S_TMP0}, s{S_TMP1}")
            e(f"s_add_u32 s{S_PC}, s{S_PC}, 64")
        e(f"s_lshl_b32 s{S_PC}, s{S_PC}, 13")
        e(f"s_add_u32 s{S_PC}, s{S_PC}, s{S_PB}")
        e(f"s_add_u32 s{S_TMP1}, s{S_PC}, 4096")
        for jj in range(8):
            so = S_PC if jj < 4 else S_TMP1
            e(f"buffer_load_dwordx4 {preg(i, jj)}, v{V_PL}, s[{S_WS}:{S_WS+3}], s{so} offen offset:{(jj % 4)*1024}{SC1}")

    def piece_base():
        e(f"v_lshlrev_b32 v{V_PL}, 4, v{L}")
        e(f"s_mul_i32 s{S_PB}, s{S_T}, {72*8192}")
        e(f"s_add_u32 s{S_PB}, s{S_PB}, {WS_PART}")

    R = CV.Regs()


    def publish_partials():
        e("s_waitcnt vmcnt(0)")
        flag_store(S_F3B)()
    def early_pieces():
        e(f"v_mov_b32 v3, {S3WORD}")
        e("ds_read_b32 v2, v3")
        e(f"s_mov_b32 s{S_EARLY}, 0")
        e("s_waitcnt lgkmcnt(0)")
        e("v_cmp_ne_u32 vcc, 1, v2")
        piece_base()
        e("s_nop 1")
        e("s_cbranch_vccnz M_NOT_EARLY")
        e(f"s_mov_b32 s{S_EARLY}, 1")
        issue_piece(0)
        issue_piece(1)
        a.label("M_NOT_EARLY")
    nst_save = nst[0]
    e(f"s_mov_b32 s{S_EARLY}, 0")
    hk = {("hook", opt.get('pubat', 16)): publish_partials, ("hook", opt.get('opat', 24)): final_operand_loads, "stamp": stamp}
    if opt.get('early', False):
        hk[("hook", opt.get('earlyat', 40))] = early_pieces
    CV.gen_conv(a, R, S_CH, S_LDS, S_UB, S_WS, 80, useq[0], publish_sc=SC1, hooks=hk, progressive=opt.get('prog', True), PRE=opt.get('pre', 3))
    nst_conv = nst[0]
    if opt.get('early', False):
        e(f"s_waitcnt vmcnt({19 if opt.get('prog', True) else 20})")
        e(f"s_cmp_eq_u32 s{S_EARLY}, 1")
        e("s_cbranch_scc1 M_TWO")
    e(f"s_waitcnt vmcnt({3 if opt.get('prog', True) else 4})")
    e("s_branch M_WAIT_WORD")

    a.label("M_REDUCE")
    nst[0] = nst_save
    e(f"s_mov_b32 s{S_EARLY}, 0")
    e("s_waitcnt vmcnt(0) lgkmcnt(0)")
    flag_store(S_F3B)()
    final_operand_loads()
    e("s_waitcnt vmcnt(0)")
    e(f"s_cmp_lg_u32 s{S_WV}, 3")
    e("s_cbranch_scc1 M_WAIT_WORD")
    e(f"s_lshl_b32 s{S_TMP0}, s{S_T}, 3")
    e(f"s_add_u32 s{S_TMP0}, s{S_TMP0}, s{S_J}")
    e(f"s_lshl_b32 s{S_TMP0}, s{S_TMP0}, 5")
    e(f"s_add_u32 s{S_TMP0}, s{S_TMP0}, {WS_FLAG3}")
    e(f"s_and_b32 s{S_TMP1}, s{S_J}, 1")
    e(f"s_lshr_b32 s{S_TMP2}, s{S_J}, 2")
    e(f"s_lshl_b32 s{S_TMP2}, s{S_TMP2}, 1")
    e(f"s_add_u32 s{S_TMP1}, s{S_TMP1}, s{S_TMP2}")
    e(f"s_lshl_b32 s{S_TMP2}, s{S_T}, 2")
    e(f"s_add_u32 s{S_TMP1}, s{S_TMP1}, s{S_TMP2}")
    e(f"s_lshl_b32 s{S_TMP1}, s{S_TMP1}, 5")
    e(f"s_add_u32 s{S_TMP1}, s{S_TMP1}, {WS_FLAG3X}")
    e(f"v_and_b32 v2, 7, v{L}")
    e("v_lshlrev_b32 v2, 2, v2")
    e(f"v_mov_b32 v3, s{S_TMP0}")
    e(f"v_mov_b32 v4, s{S_TMP1}")
    e(f"v_cmp_gt_u32 vcc, 32, v{L}")
    e("s_nop 1")
    e("v_cndmask_b32 v3, v4, v3, vcc")
    e("v_add_u32 v2, v2, v3")
    e(f"s_mov_b32 s{S_TMP0}, 0")
    a.label("M_SPIN3")
    e(f"buffer_load_dword v3, v2, s[{S_WS}:{S_WS+3}], 0 offen{SC1}")
    e("s_waitcnt vmcnt(0)")
    e("v_cmp_ne_u32 vcc, 1, v3")
    e(f"s_add_u32 s{S_TMP0}, s{S_TMP0}, 1")
    e(f"s_cmp_ge_u32 s{S_TMP0}, {SPIN_LIMIT}")
    e("s_cbranch_scc1 M_SPIN3_DONE")
    e("s_cbranch_vccz M_SPIN3_DONE")
    e(f"s_sleep {opt.get('sl3', 3)}")
    e("s_branch M_SPIN3")
    a.label("M_SPIN3_DONE")
    e("v_mov_b32 v2, 1")
    e(f"v_mov_b32 v3, {S3WORD}")
    e("ds_write_b32 v3, v2")
    e("s_branch M_S3_OK")
    a.label("M_WAIT_WORD")
    e(f"v_mov_b32 v3, {S3WORD}")
    e(f"s_mov_b32 s{S_TMP0}, 0")
    a.label("M_SPIN3W")
    e("ds_read_b32 v2, v3")
    e("s_waitcnt lgkmcnt(0)")
    e("v_cmp_ne_u32 vcc, 1, v2")
    e(f"s_add_u32 s{S_TMP0}, s{S_TMP0}, 1")
    e(f"s_cmp_ge_u32 s{S_TMP0}, {SPIN_LIMIT*8}")
    e("s_cbranch_scc1 M_S3_OK")
    e("s_cbranch_vccz M_S3_OK")
    e("s_sleep 1")
    e("s_branch M_SPIN3W")
    a.label("M_S3_OK")
    nst[0] = max(nst_conv, nst_save)
    stamp()
    piece_base()
    issue_piece(0)
    issue_piece(1)
    e(f"s_cmp_lg_u32 s{S_WV}, 3")
    e("s_cbranch_scc1 M_TWO")
    issue_piece(2)
    a.label("M_TWO")
    SA, SB = 88, 92
    e(f"v_and_b32 v2, 15, v{L}")
    e(f"v_lshrrev_b32 v3, 4, v{L}")
    e("v_lshrrev_b32 v4, 2, v2")
    e("v_cmp_eq_u32 vcc, v3, v4")
    e("v_and_b32 v5, 1, v2")
    e("v_lshlrev_b32 v5, 4, v5")
    e("v_mov_b32 v6, 0x3f80")
    e("v_lshlrev_b32 v5, v5, v6")
    e("v_cndmask_b32 v5, 0, v5, vcc")
    e("v_and_b32 v6, 2, v2")
    e("v_cmp_eq_u32 vcc, 0, v6")
    e(f"v_mov_b32 v{SA+2}, 0")
    e(f"v_mov_b32 v{SA+3}, 0")
    e(f"v_cndmask_b32 v{SA}, 0, v5, vcc")
    e(f"v_cndmask_b32 v{SA+1}, v5, 0, vcc")
    e(f"v_mov_b32 v{SB}, 0")
    e(f"v_mov_b32 v{SB+1}, 0")
    e(f"v_mov_b32 v{SB+2}, v{SA}")
    e(f"v_mov_b32 v{SB+3}, v{SA+1}")
    y_loads("setup")
    e(f"v_lshlrev_b32 v14, 4, v{L}")
    e(f"s_lshl_b32 s{S_TMP0}, s{S_WV}, 11")
    e(f"s_add_u32 s{S_TMP0}, s{S_TMP0}, {YBUF}")
    e(f"v_add_u32 v15, {YBUF+8192}, v14")
    e(f"v_add_u32 v14, s{S_TMP0}, v14")
    e(f"v_and_b32 v2, 15, v{L}")
    e(f"v_lshrrev_b32 v3, 4, v{L}")
    e("v_lshrrev_b32 v4, 2, v2")
    e("v_and_b32 v5, 3, v2")
    e("v_lshl_add_u32 v4, v3, 2, v4")
    e("v_lshlrev_b32 v4, 5, v4")
    e("v_lshl_add_u32 v4, v5, 3, v4")
    e(f"v_add_u32 v5, {YBUF+8192}, v4")
    e(f"v_add_u32 v4, s{S_TMP0}, v4")

    def sums(i):
        O = 112 + 16 * i
        out = []
        for jj in range(8):
            cin = lambda r: "0" if jj == 0 else vr(r, 4)
            out.append(f"v_mfma_f32_16x16x32_bf16 {vr(O,4)}, {vr(SA,4)}, {preg(i, jj)}, {cin(O)}")
            out.append(f"v_mfma_f32_16x16x32_bf16 {vr(O+4,4)}, {vr(SB,4)}, {preg(i, jj)}, {cin(O+4)}")
        return out

    def activation(i):
        O, G, T = 112 + 16 * i, 120 + 16 * i, 176 + 4 * i
        C = []
        c = C.append
        for k in range(8):
            c(f"v_mul_f32 v{O+k}, 0xbf317218, v{O+k}")
        for k in range(4):
            round_pair(c, O + 2 * k, O + 2 * k + 1, T + k)
        for k in range(8):
            c(f"v_mul_f32 v{G+k}, s{S_NL2E}, v{O+k}")
        for k in range(8):
            c(f"v_exp_f32 v{G+k}, v{G+k}")
        for k in range(8):
            c(f"v_add_f32 v{G+k}, 1.0, v{G+k}")
        for k in range(8):
            c(f"v_rcp_f32 v{G+k}, v{G+k}")
        for k in range(8):
            c(f"v_mul_f32 v{G+k}, v{G+k}, v{O+k}")
        for k in range(4):
            c(f"v_cvt_pk_bf16_f32 v{GP+4*i+k}, v{G+2*k}, v{G+2*k+1}")
        return C
    PB = 16

    def pre_piece(pc, st):
        XF, S_, G_ = PB + 24 * pc, PB + 24 * pc + 8, PB + 24 * pc + 16
        O_, t0 = 96, 104
        C = []
        c = C.append
        for k in range(4):
            unpack2(c, XF + 2 * k, XF + 2 * k + 1, X + 4 * pc + k)
        for k in range(8):
            c(f"v_sub_f32 v{S_+k}, v{XF+k}, v{st}")
        for k in range(8):
            c(f"v_mul_f32 v{S_+k}, v{S_+k}, v{st+1}")
        for k in range(4):
            round_pair(c, S_ + 2 * k, S_ + 2 * k + 1, t0 + k)
        for k in range(4):
            unpack2(c, O_ + 2 * k, O_ + 2 * k + 1, D + 4 * pc + k)
        for k in range(0, 8, 2):
            c(f"v_pk_mul_f32 {vr(S_+k,2)}, {vr(S_+k,2)}, {vr(O_+k,2)}")
        return C

    def pre_g(pc):
        G_ = PB + 24 * pc + 16
        C = []
        for k in range(4):
            unpack2(C.append, G_ + 2 * k, G_ + 2 * k + 1, GP + 4 * pc + k)
        return C
    for x in schedule(pre_piece(0, ST) + pre_piece(1, ST), dist=2, window=24):
        e(x)
    e(f"s_cmp_lg_u32 s{S_WV}, 3")
    e("s_cbranch_scc1 M_PRE2")
    for x in schedule(pre_piece(2, ST + 2), dist=2, window=24):
        e(x)
    a.label("M_PRE2")
    e(f"s_cmp_eq_u32 s{S_EARLY}, 1")
    e("s_cbranch_scc1 M_PW4")
    e("s_waitcnt vmcnt(0)")
    e("s_branch M_PW")
    a.label("M_PW4")
    e(f"s_waitcnt vmcnt({1 if opt.get('prog', True) else 4})")
    a.label("M_PW")
    stamp()
    def interleave(mf, act):
        mf, act = list(mf), list(act)
        while act or mf:
            if mf:
                e(mf.pop(0))
            for _ in range(4):
                if act:
                    e(act.pop(0))
    for x in sums(0):
        e(x)
    e("s_nop 7")
    interleave(sums(1), schedule(activation(0), dist=2, window=24))
    e(f"s_cmp_lg_u32 s{S_WV}, 3")
    e("s_cbranch_scc1 M_SUM2")
    e("s_nop 7")
    interleave(sums(2), schedule(activation(1), dist=2, window=24))
    y_loads(False)
    e("s_nop 3")
    for x in schedule(activation(2), dist=2, window=24):
        e(x)
    e("s_branch M_ACT2")
    a.label("M_SUM2")
    y_loads(False)
    e("s_nop 3")
    for x in schedule(activation(1), dist=2, window=24):
        e(x)
    a.label("M_ACT2")
    e("s_nop 1")
    for pc in range(3):
        e(f"v_permlane16_swap_b32 v{GP+4*pc}, v{GP+4*pc+2}")
        e(f"v_permlane16_swap_b32 v{GP+4*pc+1}, v{GP+4*pc+3}")
    for x in schedule(pre_g(0) + pre_g(1) + pre_g(2), dist=2, window=24):
        e(x)
    stamp()
    a.label("M_Y_POLL")
    e(f"s_mov_b32 s{S_TMP0}, 0")
    a.label("M_Y_CHECK")
    e("s_waitcnt vmcnt(0)")
    e(f"v_max3_u32 v2, v{YR}, v{YR+1}, v{YR+2}")
    e(f"v_max3_u32 v3, v{YR+3}, v{YR+4}, v{YR+5}")
    e(f"v_max3_u32 v2, v2, v{YR+6}, v{YR+7}")
    e(f"v_max3_u32 v3, v3, v{YR+8}, v{YR+9}")
    e(f"v_max3_u32 v2, v2, v{YR+10}, v{YR+11}")
    e("v_max_u32 v2, v2, v3")
    e("v_cmp_eq_u32 vcc, -1, v2")
    e(f"s_add_u32 s{S_TMP0}, s{S_TMP0}, 1")
    e(f"s_cmp_ge_u32 s{S_TMP0}, {SPIN_LIMIT}")
    e("s_cbranch_scc1 M_Y_OK")
    e("s_cbranch_vccz M_Y_OK")
    e(f"s_sleep {opt.get('sly', 2)}")
    y_loads(False)
    e("s_branch M_Y_CHECK")
    a.label("M_Y_OK")
    stamp()
    e(f"ds_write_b128 v14, {vr(YR,4)}")
    e(f"ds_write_b128 v14, {vr(YR+4,4)} offset:1024")
    e(f"s_cmp_lg_u32 s{S_WV}, 3")
    e("s_cbranch_scc1 M_Y_NOX2")
    e(f"ds_write_b128 v15, {vr(YR+8,4)}")
    a.label("M_Y_NOX2")
    e("s_waitcnt lgkmcnt(0)")
    for sg in range(2):
        for h in range(2):
            e(f"ds_read_b64_tr_b16 {vr(Y+4*sg+2*h,2)}, v4 offset:{(32*sg+16*h)*32}")
    for h in range(2):
        e(f"ds_read_b64_tr_b16 {vr(Y+8+2*h,2)}, v5 offset:{16*h*32}")
    e("s_waitcnt lgkmcnt(0)")
    for pc in range(3):
        e(f"v_permlane16_swap_b32 v{Y+4*pc}, v{Y+4*pc+2}")
        e(f"v_permlane16_swap_b32 v{Y+4*pc+1}, v{Y+4*pc+3}")

    def final_piece(pc, vx, off):
        XF, S_, G_ = PB + 24 * pc, PB + 24 * pc + 8, PB + 24 * pc + 16
        Y_ = 96 + 8 * (pc % 2)
        o = 124 + 4 * (pc % 2)
        C = []
        c = C.append
        for k in range(4):
            unpack2(c, Y_ + 2 * k, Y_ + 2 * k + 1, Y + 4 * pc + k)
        for k in range(0, 8, 2):
            c(f"v_pk_add_f32 {vr(S_+k,2)}, {vr(S_+k,2)}, {vr(Y_+k,2)}")
        for k in range(0, 8, 2):
            c(f"v_pk_fma_f32 {vr(S_+k,2)}, {vr(S_+k,2)}, {vr(G_+k,2)}, {vr(XF+k,2)}")
        for k in range(4):
            c(f"v_cvt_pk_bf16_f32 v{o+k}, v{S_+2*k}, v{S_+2*k+1}")
        for x in schedule(C, dist=2, window=24):
            e(x)
        e(f"buffer_store_dwordx4 {vr(o,4)}, v{vx}, s[{S_OUT}:{S_OUT+3}], 0 offen offset:{off}{opt.get('osc', SC1)}")
    final_piece(0, VX0, 0)
    final_piece(1, VX0, 64)
    e(f"s_cmp_lg_u32 s{S_WV}, 3")
    e("s_cbranch_scc1 M_NOX")
    final_piece(2, VX1, 0)
    a.label("M_NOX")
    if dbg:
        e("s_waitcnt vmcnt(0)")
        stamp(final=True)
        sr_ = stamp_reg[0]
        e(f"s_lshl_b32 s44, s2, 2")
        e(f"s_add_u32 s44, s44, s{S_WV}")
        e(f"s_lshl_b32 s44, s44, 7")
        e(f"s_add_u32 s44, s44, {WS_STAMP}")
        e(f"v_lshlrev_b32 v3, 2, v{L}")
        e(f"v_cmp_gt_u32 vcc, 32, v{L}")
        e("s_nop 4")
        e("s_and_saveexec_b64 s[46:47], vcc")
        e(f"buffer_store_dword v{sr_}, v3, s[{S_WS}:{S_WS+3}], s44 offen")
        if dbg == "h":
            e(f"s_cmp_lg_u32 s2, {DBG_WG}")
            e("s_cbranch_scc1 M_END")
            e(f"s_cmp_lg_u32 s{S_WV}, 0")
            e("s_cbranch_scc1 M_END")
            e("s_mov_b64 exec, -1")
            e(f"v_readlane_b32 s44, v{sr_}, 0")
            e("s_nop 3")
            e(f"v_subrev_u32 v2, s44, v{sr_}")
            e(f"v_mov_b32 v4, 0")
            sel = [1, 2, 4, 5, 6, 7, 8, 9, 10, 12, 13, 14, 15, 16, 17]
            for i, k in enumerate(sel):
                e(f"v_readlane_b32 s45, v2, {k}")
                e("s_nop 3")
                e(f"v_writelane_b32 v4, s45, {i+1}")
            e(f"v_lshlrev_b32 v3, 2, v{L}")
            e(f"v_cmp_gt_u32 vcc, 16, v{L}")
            e(f"v_cmp_lt_u32 s[46:47], 0, v{L}")
            e("s_nop 4")
            e("s_and_b64 vcc, vcc, s[46:47]")
            e("s_and_saveexec_b64 s[46:47], vcc")
            e(f"buffer_store_dword v4, v3, s[{S_DBG}:{S_DBG+3}], 0 offen")
    if opt.get('enddelay'):
        e("s_waitcnt vmcnt(0)")
        e("s_memrealtime s[96:97]")
        e("s_waitcnt lgkmcnt(0)")
        e(f"s_add_u32 s44, s96, {opt['enddelay']}")
        a.label("M_DELAY")
        e("s_memrealtime s[96:97]")
        e("s_waitcnt lgkmcnt(0)")
        e("s_cmp_lt_u32 s96, s44")
        e("s_cbranch_scc1 M_DELAY")
    if ool_lines:
        e("s_endpgm")
        a.lines += ool_lines
    a.label("M_END")
    e("s_endpgm")
    text = a.text()
    return kernel_head(name) + text + "\n" + kernel_desc(name, 512, 256)
```

```python
from asmgen import *
import struct

WS_UT = 0
WS_YT = 0x250000

def fbits(x):
    return struct.unpack('<I', struct.pack('<f', x))[0]

TAB = 0
TAB_PITCH = 272
KP = 14464
KR0 = 16000
KR1 = KR0 + 5120 + 64
UB = KR1 + 5120
WAVE_LDS = 31232
assert UB + 4576 <= WAVE_LDS

ROWS = list(range(8)) + [256, 258, 260, 262, 512, 516, 768, 772, 1024, 1280, 1536, 1792, 2048]


class S4Regs:
    def __init__(self):
        self.lane = 1
        self.t = 2
        self.base = 10
        self.raw = 12
        self.dt = 21
        self.zr, self.zi = 22, 23
        self.w1, self.w2, self.w4, self.w8, self.w16, self.w256 = 24, 26, 28, 30, 32, 34
        self.x = 36
        self.e0, self.e1 = 40, 42
        self.tmp = 44
        self.cv = 52
        self.fa, self.fb = 56, 60
        self.kacc = 72
        self.acc = 96
        self.af = 128
        self.ad = 160


def cmul(a, d, x, w, t):
    return [f"v_pk_mul_f32 {vr(t,2)}, {vr(x,2)}, {vr(w,2)} op_sel:[0,0] op_sel_hi:[1,0]",
            f"v_pk_fma_f32 {vr(d,2)}, {vr(x,2)}, {vr(w,2)}, {vr(t,2)} op_sel:[1,1,0] op_sel_hi:[0,1,1] neg_lo:[1,0,0]"]


def gen_s4_body(a, R, s_ch, s_lds, srd_par, srd_ws, s_tmp, publish_sc="", dbg=False, hooks=None, par_lds=None):
    e = a.e
    L = R.lane
    st = s_tmp
    hooks = hooks or {}
    e(f"v_lshlrev_b32 v{R.t}, 2, v{L}")
    e(f"v_add_u32 v{R.t}, s{par_lds}, v{R.t}")
    for k in range(5):
        e(f"ds_read_b32 v{R.raw+k}, v{R.t} offset:{256*k}")
    for i in range(4):
        e(f"v_mov_b32 v{R.tmp+i}, 0")
    e(f"v_lshlrev_b32 v{R.t+2}, 4, v{L}")
    e(f"v_add_u32 v{R.t+3}, s{s_lds}, v{R.t+2}")
    e(f"v_cmp_gt_u32 vcc, 30, v{L}")
    e("s_nop 1")
    e(f"s_and_saveexec_b64 s[{st+4}:{st+5}], vcc")
    e(f"ds_write_b128 v{R.t+3}, {vr(R.tmp,4)} offset:{UB}")
    e(f"s_mov_b64 exec, s[{st+4}:{st+5}]")
    e(f"v_lshlrev_b32 v{R.base}, 2, v{L}")
    e(f"v_add_u32 v{R.base}, s{s_lds}, v{R.base}")
    e(f"v_and_b32 v{R.t}, 31, v{L}")
    e(f"v_lshrrev_b32 v{R.t+1}, 5, v{L}")
    e(f"v_mul_u32_u24 v{R.t+4}, {TAB_PITCH}, v{R.t}")
    e(f"v_lshl_add_u32 v{R.t+4}, v{R.t+1}, 4, v{R.t+4}")
    e(f"v_add_u32 v{R.ad}, s{s_lds}, v{R.t+4}")
    e(f"v_add_u32 v{R.ad+1}, {21*TAB_PITCH}, v{R.ad}")
    LOG2E = fbits(1.4426950408889634)
    e(f"s_mov_b32 s{st+3}, {LOG2E:#x}")
    a.wait(lgkm=0)
    e(f"s_and_b32 s{st}, s{s_ch}, 1")
    e(f"s_lshl_b32 s{st}, s{st}, 4")
    e(f"s_sub_u32 s{st}, 16, s{st}")
    e(f"v_lshlrev_b32 v{R.dt}, s{st}, v{R.raw+4}")
    e(f"v_and_b32 v{R.dt}, 0xffff0000, v{R.dt}")
    e(f"v_mul_f32 v{R.dt}, s{st+3}, v{R.dt}")
    e(f"v_exp_f32 v{R.dt}, v{R.dt}")
    e("s_nop 0")
    e(f"v_cvt_pk_bf16_f32 v{R.dt}, v{R.dt}, v{R.dt}")
    e(f"v_lshlrev_b32 v{R.dt}, 16, v{R.dt}")
    INV2PI = fbits(0.15915494309189535)

    def wdirect(d, p):
        t = R.t
        out = [f"v_mul_f32 v{t}, {float(p)!r}, v{R.zr}" if p != 1 else f"v_mov_b32 v{t}, v{R.zr}",
               f"v_mul_f32 v{t+1}, {float(p)!r}, v{R.zi}" if p != 1 else f"v_mov_b32 v{t+1}, v{R.zi}",
               f"v_exp_f32 v{t}, v{t}",
               f"v_fract_f32 v{t+1}, v{t+1}",
               f"s_nop 0",
               f"v_cos_f32 v{d}, v{t+1}",
               f"v_sin_f32 v{d+1}, v{t+1}",
               f"s_nop 0",
               f"v_mul_f32 v{d}, v{d}, v{t}",
               f"v_mul_f32 v{d+1}, v{d+1}, v{t}"]
        return [x.replace("8.0,", f"{fbits(8.0):#x},").replace("256.0,", f"{fbits(256.0):#x},") for x in out]

    for p in range(2):
        la, ai, cr, ci = R.raw, R.raw + 1, R.raw + 2, R.raw + 3

        def up(dst, src):
            if p == 0:
                e(f"v_lshlrev_b32 v{dst}, 16, v{src}")
            else:
                e(f"v_and_b32 v{dst}, 0xffff0000, v{src}")
        a.c(f"kernel tables, modes {64*p}..{64*p+63}")
        up(R.t, la)
        e(f"v_mul_f32 v{R.t}, s{st+3}, v{R.t}")
        e(f"v_exp_f32 v{R.t}, v{R.t}")
        up(R.t + 1, ai)
        e(f"v_cvt_pk_bf16_f32 v{R.t}, v{R.t}, v{R.t}")
        e(f"v_lshlrev_b32 v{R.t}, 16, v{R.t}")
        e(f"v_mul_f32 v{R.zr}, -v{R.t}, v{R.dt}")
        e(f"v_mul_f32 v{R.zi}, v{R.t+1}, v{R.dt}")
        e(f"v_mul_f32 v{R.zr}, s{st+3}, v{R.zr}")
        e(f"v_mul_f32 v{R.zi}, {INV2PI:#x}, v{R.zi}")
        up(R.x, cr)
        up(R.x + 1, ci)
        e(f"v_mul_f32 v{R.x}, v{R.x}, v{R.dt}")
        e(f"v_mul_f32 v{R.x+1}, v{R.x+1}, v{R.dt}")
        e(f"v_add_f32 v{R.x}, v{R.x}, v{R.x}")
        e(f"v_add_f32 v{R.x+1}, v{R.x+1}, v{R.x+1}")
        for d, pw in ((R.w1, 1), (R.w8, 8), (R.w256, 256)):
            for x in wdirect(d, pw):
                e(x)
        for x in cmul(a, R.w2, R.w1, R.w1, R.tmp) + cmul(a, R.w16, R.w8, R.w8, R.tmp + 2) + cmul(a, R.w4, R.w2, R.w2, R.tmp):
            e(x)
        if p == 1:
            a.wait(lgkm=0)
        ncv = [0]

        def put(row, reg, neg):
            c = R.cv + (ncv[0] % 4)
            ncv[0] += 1
            n = "-" if neg else ""
            return [f"v_cvt_pk_bf16_f32 v{c}, v{reg}, {n}v{reg+1}",
                    f"ds_write_b32 v{R.base}, v{c} offset:{TAB + row*TAB_PITCH}"]

        XA, XB = R.x, R.x + 2
        xs = []
        xs.append(put(0, XA, False))
        xs.append(cmul(a, XB, XA, R.w256, R.tmp + 4))
        for r in range(1, 8):
            xs.append(cmul(a, XA, XA, R.w1, R.tmp + 6) + put(r, XA, False))
        xs.append(put(8, XB, False))
        xs.append(cmul(a, XA, XB, R.w2, R.tmp + 6) + put(9, XA, False))
        xs.append(cmul(a, XB, XB, R.w256, R.tmp + 4))
        xs.append(cmul(a, XA, XA, R.w2, R.tmp + 6) + put(10, XA, False))
        xs.append(cmul(a, XA, XA, R.w2, R.tmp + 6) + put(11, XA, False))
        xs.append(put(12, XB, False))
        xs.append(cmul(a, XA, XB, R.w4, R.tmp + 6) + put(13, XA, False))
        xs.append(cmul(a, XB, XB, R.w256, R.tmp + 4) + put(14, XB, False))
        xs.append(cmul(a, XA, XB, R.w4, R.tmp + 6) + put(15, XA, False))
        for r in range(16, 21):
            xs.append(cmul(a, XB, XB, R.w256, R.tmp + 4) + put(r, XB, False))
        es = []
        es.append([f"v_mov_b32 v{R.e0}, 1.0", f"v_mov_b32 v{R.e0+1}, 0", f"v_mov_b32 v{R.e1}, v{R.w8}", f"v_mov_b32 v{R.e1+1}, v{R.w8+1}"]
                  + put(21, R.e0, True) + put(22, R.e1, True))
        for c in range(2, 32, 2):
            m0 = cmul(a, R.e0, R.e0, R.w16, R.tmp)
            m1 = cmul(a, R.e1, R.e1, R.w16, R.tmp + 2)
            es.append([m0[0], m1[0], m0[1], m1[1]] + put(21 + c, R.e0, True) + put(22 + c, R.e1, True))
        n = max(len(xs), len(es))
        for i in range(n):
            if i < len(es):
                for x in es[i]:
                    e(x)
            if i < len(xs):
                for x in xs[i]:
                    e(x)
        for i in range(len(xs), n):
            pass
        a.wait(lgkm=0)
        for s in range(8):
            fa, fb = R.fa + 8 * (s % 2), R.fb + 8 * (s % 2)
            if s == 0:
                e(f"ds_read_b128 {vr(fa,4)}, v{R.ad} offset:{TAB}")
                e(f"ds_read_b128 {vr(fb,4)}, v{R.ad+1} offset:{TAB}")
            if s + 1 < 8:
                fa2, fb2 = R.fa + 8 * ((s + 1) % 2), R.fb + 8 * ((s + 1) % 2)
                e(f"ds_read_b128 {vr(fa2,4)}, v{R.ad} offset:{TAB + (s+1)*32}")
                e(f"ds_read_b128 {vr(fb2,4)}, v{R.ad+1} offset:{TAB + (s+1)*32}")
                a.wait(lgkm=2)
            else:
                a.wait(lgkm=0)
            cin = "0" if (p == 0 and s == 0) else vr(R.kacc, 16)
            e(f"v_mfma_f32_32x32x16_bf16 {vr(R.kacc,16)}, {vr(fa,4)}, {vr(fb,4)}, {cin}")
    if "after_kgen" in hooks:
        hooks["after_kgen"]()
    if "before_u" in hooks:
        hooks["before_u"]()
    UR = 176
    e(f"s_lshl_b32 s{st+2}, s{s_ch}, 12")
    e(f"s_add_u32 s{st+2}, s{st+2}, {WS_UT}")
    e(f"v_lshlrev_b32 v{R.t+2}, 4, v{L}")
    useq = None
    for kq in range(4):
        useq = a.vmem(f"buffer_load_dwordx4 {vr(UR+4*kq,4)}, v{R.t+2}, s[{srd_ws}:{srd_ws+3}], s{st+2} offen offset:{kq*1024}{publish_sc}")
    if "stamp" in hooks:
        hooks["stamp"]()
    a.c("compact kernel table")
    col, h = R.t, R.t + 1
    e(f"v_and_b32 v{col}, 31, v{L}")
    e(f"v_lshrrev_b32 v{h}, 5, v{L}")
    A0, A1, A2, A3, A4 = R.ad + 2, R.ad + 3, R.ad + 4, R.ad + 5, R.ad + 6
    e(f"v_lshlrev_b32 v{A0}, 4, v{col}")
    e(f"v_lshl_add_u32 v{A0}, v{h}, 3, v{A0}")
    e(f"v_add_u32 v{A0}, s{s_lds}, v{A0}")
    e(f"v_cmp_eq_u32 vcc, 0, v{h}")
    e(f"v_lshlrev_b32 v{R.t+2}, 3, v{col}")
    e(f"v_lshlrev_b32 v{R.t+3}, 2, v{col}")
    e(f"v_add_u32 v{R.t+4}, 512, v{R.t+2}")
    e(f"v_add_u32 v{R.t+5}, 768, v{R.t+3}")
    e(f"v_cndmask_b32 v{A1}, v{R.t+5}, v{R.t+4}, vcc")
    e(f"v_add_u32 v{R.t+4}, 516, v{R.t+2}")
    e(f"v_add_u32 v{R.t+5}, 896, v{R.t+3}")
    e(f"v_cndmask_b32 v{A2}, v{R.t+5}, v{R.t+4}, vcc")
    e(f"v_lshlrev_b32 v{R.t+2}, 1, v{col}")
    e(f"v_lshl_add_u32 v{A3}, v{h}, 8, v{R.t+2}")
    e(f"v_add_u32 v{A3}, 1024, v{A3}")
    e(f"v_lshl_add_u32 v{A4}, v{h}, 8, v{R.t+2}")
    e(f"v_add_u32 v{A4}, 1024, v{A4}")
    for r in (A1, A2, A3, A4):
        e(f"v_add_u32 v{r}, s{s_lds}, v{r}")
    e("s_nop 7")
    e("s_nop 7")
    K = R.kacc
    cv = R.tmp
    for i in range(6):
        e(f"v_cvt_pk_bf16_f32 v{cv+i}, v{K+2*i}, v{K+2*i+1}")
    e(f"ds_write_b64 v{A0}, {vr(cv,2)} offset:{KP}")
    e(f"ds_write_b32 v{A1}, v{cv+2} offset:{KP}")
    e(f"ds_write_b32 v{A2}, v{cv+3} offset:{KP}")
    e(f"ds_write_b16 v{A3}, v{cv+4} offset:{KP}")
    e(f"ds_write_b16_d16_hi v{A4}, v{cv+4} offset:{KP+64}")
    e(f"ds_write_b16 v{A4}, v{cv+5} offset:{KP+128}")
    e(f"ds_write_b16_d16_hi v{A4}, v{cv+5} offset:{KP+192}")
    a.c("expansion to the reversed 2048-entry kernel")
    SW, LO, HI = st + 4, st + 5, st + 6
    e(f"s_mov_b32 s{SW}, 0x01000302")
    e(f"s_mov_b32 s{LO}, 0x01000100")
    e(f"s_mov_b32 s{HI}, 0x03020302")
    CH = R.ad + 2
    e(f"v_lshlrev_b32 v{CH}, 4, v{L}")
    e(f"v_add_u32 v{CH}, s{s_lds}, v{CH}")
    S3, S2, S1, S0, SEL = R.ad + 3, R.ad + 4, R.ad + 5, R.ad + 6, R.ad + 7
    e(f"v_lshlrev_b32 v{R.t}, 1, v{L}")
    e(f"v_sub_u32 v{S3}, {2*(639-64)}, v{R.t}")
    e(f"v_lshlrev_b32 v{R.t}, 2, v{L}")
    e(f"v_sub_u32 v{S2}, {2*(766-256)}, v{R.t}")
    e(f"v_lshlrev_b32 v{R.t}, 3, v{L}")
    e(f"v_sub_u32 v{S1}, {2*(1148-4*192)}, v{R.t}")
    e(f"v_lshlrev_b32 v{R.t}, 4, v{L}")
    e(f"v_sub_u32 v{S0}, {2*(2040-8*192)}, v{R.t}")
    e(f"v_max_i32 v{S1}, 0, v{S1}")
    e(f"v_min_i32 v{S0}, 496, v{S0}")
    for r in (S3, S2, S1, S0):
        e(f"v_add_u32 v{r}, s{s_lds}, v{r}")
    e(f"v_and_b32 v{R.t}, 1, v{L}")
    e(f"v_cmp_eq_u32 vcc, 1, v{R.t}")
    e(f"v_mov_b32 v{R.t+1}, s{LO}")
    e(f"v_mov_b32 v{R.t+2}, 0x05040100")
    e(f"v_cndmask_b32 v{SEL}, v{R.t+1}, v{R.t+2}, vcc")
    a.wait(lgkm=0)
    T = R.af
    TB = R.tmp
    e(f"ds_read_u16 v{T}, v{S3} offset:{KP+128}")
    e(f"ds_read_u16 v{TB}, v{S3} offset:{KP+130}")
    e(f"ds_read_u16 v{T+1}, v{S3} offset:{KP}")
    e(f"ds_read_u16 v{TB+1}, v{S3} offset:{KP+2}")
    e(f"ds_read_b32 v{T+2}, v{S2} offset:{KP}")
    e(f"ds_read_u16 v{T+3}, v{S2} offset:{KP+4}")
    e(f"ds_read_b64 {vr(T+4,2)}, v{S1} offset:{KP}")
    e(f"ds_read_u16 v{T+6}, v{S1} offset:{KP+8}")
    e(f"ds_read_b128 {vr(T+8,4)}, v{S0} offset:{KP}")
    O = T + 12
    a.wait(lgkm=0)
    for m in range(2):
        o = O + 4 * m
        e(f"v_perm_b32 v{o}, v{TB+m}, v{TB+m}, s{LO}")
        e(f"v_perm_b32 v{o+1}, v{T+m}, v{TB+m}, v{SEL}")
        e(f"v_perm_b32 v{o+2}, v{T+m}, v{T+m}, s{LO}")
        e(f"v_perm_b32 v{o+3}, v{T+m}, v{T+m}, s{LO}")
    o = O + 8
    e(f"v_perm_b32 v{o}, v{T+3}, v{T+3}, s{LO}")
    e(f"v_perm_b32 v{o+1}, v{T+2}, v{T+2}, s{HI}")
    e(f"v_perm_b32 v{o+2}, v{T+2}, v{T+2}, s{SW}")
    e(f"v_perm_b32 v{o+3}, v{T+2}, v{T+2}, s{LO}")
    o = O + 12
    e(f"s_mov_b32 s{st+7}, 0x03020504")
    e(f"v_perm_b32 v{o}, v{T+6}, v{T+5}, s{st+7}")
    e(f"v_perm_b32 v{o+1}, v{T+5}, v{T+5}, s{LO}")
    e(f"v_perm_b32 v{o+2}, v{T+5}, v{T+4}, s{st+7}")
    e(f"v_perm_b32 v{o+3}, v{T+4}, v{T+4}, s{LO}")
    o2 = O + 16
    for i in range(4):
        e(f"v_perm_b32 v{o2+i}, v{T+11-i}, v{T+11-i}, s{SW}")
    e(f"v_cmp_gt_u32 vcc, 32, v{L}")
    e("s_nop 1")
    for i in range(4):
        e(f"v_cndmask_b32 v{o+i}, v{o2+i}, v{o+i}, vcc")
    for i in range(4):
        e(f"v_mov_b32 v{o2+i}, 0")
    for m in range(5):
        e(f"ds_write_b128 v{CH}, {vr(O+4*m,4)} offset:{KR0 + m*1024}")
    a.wait(lgkm=0)
    for m in range(5):
        e(f"ds_read_b32 v{T+m}, v{CH} offset:{KR0 + m*1024 - 4}")
    a.wait(lgkm=0)
    for m in range(5):
        o = O + 4 * m
        e(f"v_alignbit_b32 v{T+5}, v{o}, v{T+m}, 16")
        e(f"v_alignbit_b32 v{T+6}, v{o+1}, v{o}, 16")
        e(f"v_alignbit_b32 v{T+7}, v{o+2}, v{o+1}, 16")
        e(f"v_alignbit_b32 v{T+8}, v{o+3}, v{o+2}, 16")
        e(f"v_mov_b32 v{o}, v{T+5}")
        e(f"v_mov_b32 v{o+1}, v{T+6}")
        e(f"v_mov_b32 v{o+2}, v{T+7}")
        e(f"v_mov_b32 v{o+3}, v{T+8}")
        e(f"ds_write_b128 v{CH}, {vr(o,4)} offset:{KR1 + m*1024}")
    a.c("u fragments")
    UA = R.ad + 2
    e(f"v_and_b32 v{R.t}, 15, v{L}")
    e(f"v_lshrrev_b32 v{R.t+1}, 4, v{L}")
    e(f"v_lshlrev_b32 v{UA}, 5, v{R.t}")
    e(f"v_lshl_add_u32 v{UA}, v{R.t+1}, 4, v{UA}")
    e(f"v_add_u32 v{UA}, s{s_lds}, v{UA}")
    KA = R.ad + 3
    e(f"v_lshlrev_b32 v{R.t+2}, 3, v{R.t+1}")
    e(f"v_sub_u32 v{R.t+2}, v{R.t+2}, v{R.t}")
    e(f"v_lshlrev_b32 v{R.t+2}, 1, v{R.t+2}")
    e(f"v_and_b32 v{R.t+3}, 1, v{R.t}")
    e(f"v_cmp_eq_u32 vcc, 1, v{R.t+3}")
    e(f"v_mov_b32 v{R.t+4}, {KR1 + 2*2032}")
    e(f"v_mov_b32 v{R.t+5}, {KR0 + 2*2031}")
    e(f"v_cndmask_b32 v{R.t+4}, v{R.t+4}, v{R.t+5}, vcc")
    e(f"v_add_u32 v{R.t+2}, v{R.t+2}, v{R.t+4}")
    e(f"v_add_u32 v{R.t+2}, s{s_lds}, v{R.t+2}")
    for g in range(4):
        e(f"v_subrev_u32 v{KA+g}, {64*(16*g+15)}, v{R.t+2}")
    a.wait(vm=a.vm_n(useq))
    e(f"v_lshlrev_b32 v{R.t+6}, 4, v{L}")
    e(f"v_add_u32 v{R.t+6}, s{s_lds}, v{R.t+6}")
    for kq in range(4):
        e(f"ds_write_b128 v{R.t+6}, {vr(UR+4*kq,4)} offset:{UB+480+kq*1024}")
    a.wait(lgkm=0)
    for m in range(64):
        e(f"ds_read_b128 {ar(4*m,4)}, v{UA} offset:{UB + 64*m}")
        if m % 8 == 7 and m < 63:
            a.wait(lgkm=7)

    if "stamp" in hooks:
        hooks["stamp"]()
    a.c("Toeplitz convolution")
    NB = 8

    def aread(ee):
        r = R.af + 4 * (ee % NB)
        g = ee // 16
        o = 16 * (16 * g + 15 - ee)
        return [f"ds_read2_b32 {vr(r,2)}, v{KA+g} offset0:{o} offset1:{o+1}",
                f"ds_read2_b32 {vr(r+2,2)}, v{KA+g} offset0:{o+2} offset1:{o+3}"]
    PRE = 3
    for ee in range(PRE):
        for x in aread(ee):
            e(x)
    for ee in range(64):
        if ee + PRE < 64:
            pend = aread(ee + PRE)
            a.wait(lgkm=2 * (PRE - 1))
        else:
            pend = []
            a.wait(lgkm=max(0, 2 * (63 - ee)))
        jmin = max(0, -(-(ee - 7) // 8))
        k = 0
        for j in range(jmin, 8):
            c = R.acc + 4 * j
            cin = "0" if ee == 0 else vr(c, 4)
            m = 8 * j - ee + 7
            e(f"v_mfma_f32_16x16x32_bf16 {vr(c,4)}, {vr(R.af + 4*(ee % NB),4)}, {ar(4*m,4)}, {cin}")
            if pend and k == 0:
                for x in pend:
                    e(x)
                pend = []
            k += 1
    if "stamp" in hooks:
        hooks["stamp"]()
    e(f"v_and_b32 v{R.t}, 15, v{L}")
    e(f"v_lshrrev_b32 v{R.t+1}, 4, v{L}")
    e(f"v_lshlrev_b32 v{R.t+2}, 5, v{R.t}")
    e(f"v_lshl_add_u32 v{R.t+2}, v{R.t+1}, 3, v{R.t+2}")
    e(f"s_lshl_b32 s{st}, s{s_ch}, 12")
    e(f"s_add_u32 s{st}, s{st}, {WS_YT}")
    e("s_nop 4")
    for j in range(8):
        c = R.acc + 4 * j
        o = R.tmp + 2 * (j % 4)
        e(f"v_cvt_pk_bf16_f32 v{o}, v{c}, v{c+1}")
        e(f"v_cvt_pk_bf16_f32 v{o+1}, v{c+2}, v{c+3}")
        a.vmem(f"buffer_store_dwordx2 {vr(o,2)}, v{R.t+2}, s[{srd_ws}:{srd_ws+3}], s{st} offen offset:{512*j}{publish_sc}")


K2_LDS = 4 * WAVE_LDS


def simple_stamps(a, idx, area, lane, srd, wavesgpr):
    e = a.e
    e("s_waitcnt vmcnt(0) lgkmcnt(0)")
    e("s_memrealtime s[78:79]")
    e("s_waitcnt lgkmcnt(0)")
    e("v_mov_b32 v2, 0")
    for i in range(idx):
        e(f"v_writelane_b32 v2, s{60+2*i}, {i}")
    e(f"v_writelane_b32 v2, s78, {idx}")
    e(f"s_lshl_b32 s44, s2, 2")
    e(f"s_add_u32 s44, s44, s{wavesgpr}")
    e(f"s_lshl_b32 s44, s44, 6")
    e(f"s_add_u32 s44, s44, {area}")
    e(f"v_lshlrev_b32 v3, 2, v{lane}")
    e(f"v_cmp_gt_u32 vcc, 16, v{lane}")
    e("s_nop 4")
    e("s_and_saveexec_b64 s[46:47], vcc")
    e(f"buffer_store_dword v2, v3, s[{srd}:{srd+3}], s44 offen")


def gen_k2(name, dbg=False):
    a = Asm()
    e = a.e
    R = S4Regs()
    e("s_cmp_ge_u32 s2, 144")
    e("s_cbranch_scc1 K2_END")
    if dbg:
        e("s_memrealtime s[60:61]")
    e("s_load_dwordx4 s[44:47], s[0:1], 8")
    e("s_load_dwordx4 s[48:51], s[0:1], 24")
    e("s_load_dwordx2 s[52:53], s[0:1], 40")
    e("s_load_dwordx2 s[54:55], s[0:1], 96")
    e(f"v_and_b32 v{R.lane}, 63, v0")
    e("v_lshrrev_b32 v2, 6, v0")
    e("s_lshl_b32 s29, s2, 2")
    e("s_nop 0")
    e("v_readfirstlane_b32 s28, v2")
    e("s_nop 3")
    e("s_add_u32 s29, s29, s28")
    e(f"s_mul_i32 s30, s28, {WAVE_LDS}")
    e("s_waitcnt lgkmcnt(0)")
    srd = {"la": 4, "ai": 8, "cr": 12, "ci": 16, "ldt": 20}
    for nm, lo, size in (("la", 44, 147456), ("ai", 46, 147456), ("cr", 48, 147456), ("ci", 50, 147456), ("ldt", 52, 1152)):
        S = srd[nm]
        e(f"s_mov_b32 s{S}, s{lo}")
        e(f"s_mov_b32 s{S+1}, s{lo+1}")
        e(f"s_mov_b32 s{S+2}, {size}")
        e(f"s_mov_b32 s{S+3}, 0x20000")
    e("s_mov_b32 s24, s54")
    e("s_mov_b32 s25, s55")
    e("s_mov_b32 s26, 0x1800000")
    e("s_mov_b32 s27, 0x20000")
    gen_s4_body(a, R, 29, 30, srd, 24, 32, dbg=dbg)
    if dbg:
        simple_stamps(a, 5, 0x1740000, R.lane, 24, 28)
    a.label("K2_END")
    e("s_endpgm")
    return kernel_head(name) + a.text() + "\n" + kernel_desc(name, 512, 256)
```

```python
import re

_REG = re.compile(r'(-|\|)?\b([vsa])(?:(\d+)|\[(\d+):(\d+)\])')
TRANS = ("v_exp_f32", "v_rcp_f32", "v_sqrt_f32", "v_sin_f32", "v_cos_f32", "v_log_f32", "v_rsq_f32")


def regs(tok):
    out = []
    for m in _REG.finditer(tok):
        k = m.group(2)
        if m.group(3) is not None:
            out.append((k, int(m.group(3))))
        else:
            out += [(k, r) for r in range(int(m.group(4)), int(m.group(5)) + 1)]
    return out


def parse(ins):
    op, _, rest = ins.partition(" ")
    rest = re.split(r"\s(?:offset|op_sel|neg_|offen|sc0|sc1|nt|row_|quad_)", " " + rest)[0]
    ops = [x.strip() for x in rest.split(",")]
    reads, writes = set(), set()
    if op.startswith("ds_write"):
        for o in ops:
            reads |= set(regs(o))
        reads.add(("lds", 0)); writes.add(("lds", 0))
    elif op.startswith("ds_read"):
        writes |= set(regs(ops[0]))
        for o in ops[1:]:
            reads |= set(regs(o))
        reads.add(("lds", 0))
    elif op.startswith("v_cmp"):
        if ops[0] == "vcc":
            writes.add(("vcc", 0))
        else:
            writes |= set(regs(ops[0]))
        for o in ops[1:]:
            reads |= set(regs(o))
    elif op.startswith("v_permlane") and "swap" in op:
        for o in ops:
            reads |= set(regs(o)); writes |= set(regs(o))
    else:
        writes |= set(regs(ops[0]))
        for o in ops[1:]:
            if o == "vcc":
                reads.add(("vcc", 0))
            reads |= set(regs(o))
        if op.startswith(("v_fmac", "v_mfma")) and False:
            reads |= set(regs(ops[0]))
    return op, reads, writes


def schedule(code, dist=3, window=48):
    n = len(code)
    P = [parse(c) for c in code]
    raw = [set() for _ in range(n)]
    order = [set() for _ in range(n)]
    lastw, lastr = {}, {}
    for i, (op, rd, wr) in enumerate(P):
        for r in rd:
            if r in lastw:
                raw[i].add(lastw[r])
        for r in wr:
            if r in lastw:
                order[i].add(lastw[r])
            for j in lastr.get(r, ()):
                if j != i:
                    order[i].add(j)
        for r in rd:
            lastr.setdefault(r, []).append(i)
        for r in wr:
            lastw[r] = i
            lastr[r] = [j for j in lastr.get(r, ()) if j == i]
    done = {}
    out = []
    pending = list(range(n))
    slot = 0
    while pending:
        best = None
        for idx, i in enumerate(pending[:window]):
            if any(j not in done for j in raw[i] | order[i]):
                continue
            gap = min([slot - done[j] for j in raw[i]] or [99])
            if gap >= dist:
                best = i
                break
            if best is None or gap > bestgap:
                best, bestgap = i, gap
        i = best
        need = 0
        for j in raw[i]:
            g = slot - done[j] - 1
            if P[j][0].startswith(TRANS) and not P[i][0].startswith(TRANS):
                need = max(need, 1 - g)
            if P[j][0].startswith("v_cmp"):
                need = max(need, 2 - g)
            if P[i][0].startswith("v_permlane"):
                need = max(need, 2 - g)
        if need > 0:
            out.append(f"s_nop {need-1}")
            slot += 1 if need == 1 else need
        out.append(code[i])
        done[i] = slot
        slot += 1
        pending.remove(i)
    return out
```

```python
from build import *
import mono, sys
name = "recurrent_scan__ssm_conv_s4d__dense_activation_silu__prompt_kernel"
tag = sys.argv[1] if len(sys.argv) > 1 else "m1"
for dbg, sfx in ((False, ""), (True, "d"), ("h", "h"), ("k", "k"), ("p", "q"), ("s", "s"), ("c", "c"), ("t", "t"), ("u", "u")):
    assemble([(name, 256, 256, mono.LDS_BYTES)], [mono.gen(name, dbg=dbg)], f"scratch/{tag}{sfx}.s")
    to_co(f"scratch/{tag}{sfx}.s", f"scratch/{tag}{sfx}.co")

assemble([(name, 256, 256, mono.LDS_BYTES)], [mono.gen(name)], f"scratch/{tag}p.s", plain=True)
to_co(f"scratch/{tag}p.s", f"scratch/{tag}p.co")
```

```python
from asmgen import *
import conv as CV
import kgen as KG
from sched import schedule
from fin import unpack2, round_pair

WS_UT = 0
WS_FLAG2 = 0x244000
WS_FLAG3 = 0x245000
WS_FLAG3X = 0x248000
WS_YT = 0x250000
WS_PART = 0x500000
WS_STAMP = 0x1700000
WS_SIZE = 0x1800000

EX = 0
TMP = 73728
RING = 90112
STATS = RING + 4 * 16384
S3WORD = STATS + 512
PARAM = STATS + 1024
LDS_BYTES = PARAM + 4 * 1536
GBUF = 63488
YBUF = 3 * 10368

S_X, S_W1, S_W2, S_WS = 4, 8, 12, 16
S_WV, S_J, S_T, S_WN, S_WK = 20, 21, 22, 23, 24
S_RB = 25
S_BASE = {('S', 1): 26, ('F', 1, 0): 27, ('F', 1, 1): 28, ('S', 2): 31, ('F', 2, 0): 32, ('F', 2, 1): 33}
S_SOFF = 30
S_U0, S_U1 = 34, 35
S_TMP0, S_TMP1, S_TMP2, S_NL2E = 36, 37, 38, 39
S_PU0, S_PU1, S_PUS = 40, 41, 42
S_ROT = 43
S_P = 44
S_K1, S_K2 = 60, 78
S_CH, S_PAR, S_ROLE, S_LDS = 52, 53, 54, 55
S_DBG = 56
S_UT = 29
S_UB = 66
S_XB = 97
S_F3A, S_F3B, S_F3X = 3, 100, 101
S_ST = 96

V_LANE = 1
V_DF1, V_DS1, V_AF1, V_AS1 = 4, 8, 10, 14
V_DF2, V_DS2, V_AF2, V_AS2 = 16, 20, 22, 26
V_L16, V_L16H = 28, 29
V_EXH, V_EXH2, V_EXS = 30, 3, 60
V_AFX = 34
V_TW, V_TR = 31, 32
V_PART = 33
V_T = 34
V_PK = 42
V_X0 = 50
V_STAMP = 63
V_A = 64
V_ACC = (96, 160)
V_BX = 224
V_D = 44
V_XR = 184

SC1 = " sc1"


def Breg(s, tt):
    idx = 4 * s + tt
    if idx < 64:
        return ar(4 * idx, 4)
    return vr(V_BX + 4 * (idx - 64), 4)


def Areg(buf, f):
    return V_A + 16 * buf + 4 * f


def acc_g1r1(f, tt):
    return acc(0, f, tt) if f < 2 else V_ACC[1] + 32 + ((f - 2) * 4 + tt) * 4


def acc(b, f, tt):
    return V_ACC[b] + (f * 4 + tt) * 4


class Step:
    def __init__(self, n, kind, g, r, s):
        self.n, self.kind, self.g, self.r, self.s = n, kind, g, r, s


def make_steps(g1_split_last=False):
    st = []
    for g in (1, 2):
        for i in range(18):
            st.append(Step(len(st), 'F', g, 0, i))
        if g == 1 and g1_split_last:
            for i in range(18):
                st.append(Step(len(st), 'F', g, 1, i))
        for i in range(9):
            st.append(Step(len(st), 'S', g, None, i))
        if not (g == 1 and g1_split_last):
            for i in range(18):
                st.append(Step(len(st), 'F', g, 1, i))
    return st


def silu_chain(regs, t0):
    out = []
    n = len(regs)
    for i, x in enumerate(regs):
        out.append(f"v_exp_f32 v{t0+i}, v{x}")
    for i in range(n):
        out.append(f"v_add_f32 v{t0+i}, 1.0, v{t0+i}")
    for i in range(n):
        out.append(f"v_rcp_f32 v{t0+i}, v{t0+i}")
    for i, x in enumerate(regs):
        out.append(f"v_mul_f32 v{x}, v{x}, v{t0+i}")
    return out


def srd(e, S, lo, size):
    e(f"s_mov_b32 s{S}, s{lo}")
    e(f"s_mov_b32 s{S+1}, s{lo+1}")
    e(f"s_mov_b32 s{S+2}, {size}")
    e(f"s_mov_b32 s{S+3}, 0x20000")


SPIN_LIMIT = 50000
DBG_WG = 100


def gen(name, dbg=False, opt=None):
    opt = opt or {}
    PSC = opt.get('psc', SC1)
    a = Asm()
    e = a.e
    G1SL = opt.get('g1sl', False)
    steps = make_steps(G1SL)
    NS = len(steps)
    L = V_LANE
    nst = [0]
    stamp_reg = [V_STAMP]

    def stamp(early=False, final=False):
        if not dbg:
            return
        if dbg == "e" and not final and nst[0] > 0:
            return
        if dbg == "e" and final:
            nst[0] = 1
        e(f"s_memtime s[{S_ST}:{S_ST+1}]" if dbg in ("c", "t", "u") else f"s_memrealtime s[{S_ST}:{S_ST+1}]")
        e("s_waitcnt lgkmcnt(0)")
        if early:
            e(f"v_writelane_b32 v43, s{S_ST}, {nst[0]}")
        else:
            e(f"v_writelane_b32 v{stamp_reg[0]}, s{S_ST}, {nst[0]}")
        nst[0] += 1

    e("s_cmp_ge_u32 s2, 256")
    e("s_cbranch_scc1 M_END")
    e(f"s_load_dwordx2 s[{S_P}:{S_P+1}], s[0:1], 0")
    e(f"s_load_dwordx4 s[{S_P+4}:{S_P+7}], s[0:1], 64")
    e(f"s_load_dwordx2 s[{S_P+2}:{S_P+3}], s[0:1], 96")
    e("s_load_dwordx8 s[60:67], s[0:1], 8")
    e("s_load_dwordx2 s[68:69], s[0:1], 40")
    e("s_load_dwordx2 s[70:71], s[0:1], 88")
    e("s_load_dwordx2 s[72:73], s[0:1], 48")
    e("s_load_dwordx2 s[74:75], s[0:1], 80")
    e(f"v_and_b32 v{L}, 63, v0")
    e("v_lshrrev_b32 v2, 6, v0")
    e(f"s_and_b32 s{S_TMP0}, s2, 7")
    e(f"s_lshr_b32 s{S_TMP1}, s2, 3")
    e(f"v_readfirstlane_b32 s{S_WV}, v2")
    e(f"s_lshr_b32 s{S_T}, s{S_TMP0}, 2")
    e(f"s_lshl_b32 s{S_T}, s{S_T}, 4")
    e(f"s_lshr_b32 s{S_TMP2}, s{S_TMP1}, 1")
    e(f"s_add_u32 s{S_T}, s{S_T}, s{S_TMP2}")
    e(f"s_and_b32 s{S_J}, s{S_TMP0}, 3")
    e(f"s_lshl_b32 s{S_J}, s{S_J}, 1")
    e(f"s_and_b32 s{S_TMP1}, s{S_TMP1}, 1")
    e(f"s_add_u32 s{S_J}, s{S_J}, s{S_TMP1}")
    e("s_nop 0")
    def code_prefetch(k0, k1, tag):
        e(f"s_cmp_lg_u32 s{S_WV}, 3")
        e(f"s_cbranch_scc1 M_NOPF{tag}")
        e("s_getpc_b64 s[96:97]")
        a.label(f"M_PC{tag}")
        e(f"v_lshlrev_b32 v6, 7, v{L}")
        if k0:
            e(f"v_add_u32 v6, {k0*0x2000}, v6")
        e("v_mov_b32 v7, s97")
        if opt.get('pfloop', False):
            e(f"s_mov_b32 s{S_TMP0}, {k1 - k0}")
            a.label(f"M_PFL{tag}")
            e(f"v_min_u32 v4, M_END-M_PC{tag}, v6")
            e("v_add_co_u32 v4, vcc, s96, v4")
            e("v_add_u32 v6, 0x2000, v6")
            e(f"s_sub_u32 s{S_TMP0}, s{S_TMP0}, 1")
            e("v_addc_co_u32 v5, vcc, 0, v7, vcc")
            e(f"s_cmp_lg_u32 s{S_TMP0}, 0")
            e(f"global_load_dword v{39 if tag == 'A' else 0}, v[4:5], off")
            e(f"s_cbranch_scc1 M_PFL{tag}")
        else:
            for k in range(k0, k1):
                e(f"v_min_u32 v4, M_END-M_PC{tag}, v6")
                e("v_add_co_u32 v4, vcc, s96, v4")
                e("v_add_u32 v6, 0x2000, v6")
                e("s_nop 0")
                e("v_addc_co_u32 v5, vcc, 0, v7, vcc")
                e(f"global_load_dword v{39 if tag == 'A' else 0}, v[4:5], off")
        a.label(f"M_NOPF{tag}")
    def code_prefetch_all(nw, first):
        n = 8 // nw
        if first:
            e(f"s_cmp_lt_u32 s{S_WV}, {first}")
            e("s_cbranch_scc1 M_NOPFA")
        e("s_getpc_b64 s[96:97]")
        a.label("M_PCA")
        e(f"s_sub_u32 s{S_TMP0}, s{S_WV}, {first}")
        e(f"s_mul_i32 s{S_TMP0}, s{S_TMP0}, {n*0x2000}")
        e(f"v_lshlrev_b32 v6, 7, v{L}")
        e(f"v_add_u32 v6, s{S_TMP0}, v6")
        e("v_mov_b32 v7, s97")
        for k in range(n):
            e("v_min_u32 v4, M_END-M_PCA, v6")
            e("v_add_co_u32 v4, vcc, s96, v4")
            e("v_add_u32 v6, 0x2000, v6")
            e("s_nop 0")
            e("v_addc_co_u32 v5, vcc, 0, v7, vcc")
            e("global_load_dword v39, v[4:5], off")
        a.label("M_NOPFA")
    PF0 = opt.get('pf0', 8)
    if opt.get('pfall'):
        code_prefetch_all(*opt['pfall'])
    elif opt.get('pf', True) and PF0:
        code_prefetch(0, PF0, "A")
    if opt.get('startdelay'):
        e("s_memrealtime s[96:97]")
        e("s_waitcnt lgkmcnt(0)")
        e(f"s_add_u32 s3, s96, {opt['startdelay']}")
        a.label("M_DELAY0")
        e("s_memrealtime s[96:97]")
        e("s_waitcnt lgkmcnt(0)")
        e("s_cmp_lt_u32 s96, s3")
        e("s_cbranch_scc1 M_DELAY0")
    stamp(early=True)
    e(f"v_and_b32 v2, 15, v{L}")
    e(f"v_lshrrev_b32 v3, 4, v{L}")
    e(f"s_and_b32 s{S_WN}, s{S_WV}, 1")
    e(f"s_lshr_b32 s{S_WK}, s{S_WV}, 1")
    e(f"s_and_b32 s{S_TMP0}, s{S_T}, 3")
    e(f"s_lshl_b32 s{S_TMP0}, s{S_TMP0}, 1")
    e(f"s_bfe_u32 s{S_TMP1}, s{S_T}, 0x10003")
    e(f"s_add_u32 s{S_TMP0}, s{S_TMP0}, s{S_TMP1}")
    e(f"s_mul_i32 s{S_ROT}, s{S_TMP0}, 9")
    e(f"s_lshr_b32 s{S_ROT}, s{S_ROT}, 2")
    e(f"s_lshl_b32 s{S_TMP0}, s{S_T}, 6")
    e(f"s_lshl_b32 s{S_TMP1}, s{S_WV}, 4")
    e(f"s_add_u32 s{S_TMP0}, s{S_TMP0}, s{S_TMP1}")
    e(f"v_add_u32 v40, s{S_TMP0}, v2")
    e("v_mul_u32_u24 v51, 1152, v40")
    e("v_lshl_add_u32 v51, v3, 4, v51")
    def kappa_table():
        for s in range(18):
            e(f"s_add_u32 s{S_TMP0}, s{S_ROT}, {s}")
            e(f"s_cmp_ge_u32 s{S_TMP0}, 18")
            e(f"s_cselect_b32 s{S_TMP1}, 18, 0")
            e(f"s_sub_u32 s{S_TMP0}, s{S_TMP0}, s{S_TMP1}")
            e(f"s_lshl_b32 s{S_K2+s}, s{S_TMP0}, 6")

    if not opt.get('klate', False):
        kappa_table()
    e(f"s_lshl_b32 s{S_CH}, s2, 1")
    e(f"s_add_u32 s{S_CH}, s{S_CH}, s{S_WV}")
    e(f"s_mov_b32 s{S_ROLE}, 1")
    e(f"s_cmp_lt_u32 s{S_WV}, 2")
    e("s_cbranch_scc1 M_ROLE_DONE")
    e(f"s_add_u32 s{S_CH}, s2, 512")
    e(f"s_mov_b32 s{S_ROLE}, 0")
    e(f"s_cmp_eq_u32 s{S_WV}, 3")
    e("s_cbranch_scc1 M_ROLE_DONE")
    e(f"s_cmp_lt_u32 s2, 64")
    e(f"s_cselect_b32 s{S_ROLE}, 1, 0")
    a.label("M_ROLE_DONE")
    e(f"s_mul_i32 s{S_PAR}, s{S_WV}, 1536")
    e(f"s_add_u32 s{S_PAR}, s{S_PAR}, {PARAM}")
    e("s_waitcnt lgkmcnt(0)")
    dma_seq = {}
    DEEP0 = 999
    slot_of = {}

    unit_of, owner, plan = {}, {}, {}
    ptr = 0
    prev_owner = {}
    for st_ in steps:
        if st_.kind == 'F' and ptr % 2:
            ptr += 1
        need = 2 if st_.kind == 'F' else 1
        unit_of[st_.n] = ptr % 8
        prev_owner[st_.n] = max([owner.get((ptr + k) % 8, -1) for k in range(need)])
        for k in range(need):
            owner[(ptr + k) % 8] = st_.n
        ptr += need
    queue = [(st_.n, q) for st_ in steps for q in range(4 if st_.kind == 'F' else 2)]
    head = [q_ for q_ in queue if q_[0] < 4]
    queue = queue[len(head):]
    for st_ in steps:
        budget = 8 if st_.kind == 'F' else opt.get('sbudget', 2)
        plan[st_.n] = []
        while queue and budget and prev_owner[queue[0][0]] <= st_.n and (opt.get('balance', True) or queue[0][0] <= st_.n + 4):
            if not opt.get('balance', True):
                mm = queue[0][0]
                while queue and queue[0][0] == mm:
                    plan[st_.n].append(queue.pop(0))
                break
            plan[st_.n].append(queue.pop(0))
            budget -= 1
    assert not queue
    if opt.get('showplan'):
        print({n_: [f'{mm}.{q}' for (mm, q) in plan[n_]] for n_ in plan})
    issued_at = {mm: n_ for n_ in plan for (mm, q) in plan[n_]}
    for mm, n_ in issued_at.items():
        assert n_ <= mm - 2, (mm, n_)

    def slot_m0(n):
        return f"s_add_u32 m0, s{S_RB}, {unit_of[n]*2048}"

    def dma_ops(n, wk):
        st = steps[n]
        g = st.g
        sd = S_W1 if g == 1 else S_W2
        base = S_BASE[('S', g)] if st.kind == 'S' else S_BASE[('F', g, st.r)]
        tab = S_K1 if g == 1 else S_K2
        vo = {('S', 1): V_DS1, ('F', 1): V_DF1, ('S', 2): V_DS2, ('F', 2): V_DF2}[(st.kind, g)]
        cnt = 2 if st.kind == 'S' else 4
        ops = []

        def setup():
            e(slot_m0(n))
            if st.kind == 'F':
                e(f"s_add_u32 s{S_SOFF}, s{base}, s{tab+st.s}")
            elif wk is not None:
                e(f"s_add_u32 s{S_SOFF}, s{base}, s{tab+9*wk+st.s}")
            else:
                e(f"s_cmp_eq_u32 s{S_WK}, 0")
                e(f"s_cselect_b32 s{S_SOFF}, s{tab+st.s}, s{tab+9+st.s}")
                e(f"s_add_u32 s{S_SOFF}, s{S_SOFF}, s{base}")
        ops.append(setup)
        for qq in range(cnt):
            def ld(qq=qq):
                off = f" offset:{qq*1024}" if qq else ""
                dma_seq[n] = a.vmem(f"buffer_load_dwordx4 v{vo+qq}, s[{sd}:{sd+3}], s{S_SOFF} offen{off} lds")
            ops.append(ld)
        return ops

    def a_reads(n):
        st = steps[n]
        buf = n % 2
        sl = 0
        slot_off = unit_of[n] * 2048
        out = []
        if st.kind == 'F':
            va = V_AF1 if st.g == 1 else (V_AF2 if sl < 4 else V_AFX)
            pst = 512 if st.g == 1 else 2048
            nf = 4
        else:
            va = V_AS1 if st.g == 1 else V_AS2
            pst = 256 if st.g == 1 else 1024
            nf = 2
        for f in range(nf):
            for p in range(2):
                r = Areg(buf, f) + 2 * p
                out.append(f"ds_read_b64_tr_b16 {vr(r,2)}, v{va+f} offset:{slot_off+p*pst}")
        return out

    def setup():
        srd(e, S_DBG, 70, 256)
        srd(e, S_W1, S_P + 4, 5308416)
        srd(e, S_W2, S_P + 6, 5308416)
        srd(e, S_WS, S_P + 2, WS_SIZE)
        srd(e, 48, 72, 1152)
        e("s_mov_b32 s98, s74")
        e("s_mov_b32 s99, s75")
        for s in range(18):
            e(f"s_mul_i32 s{S_K1+s}, s{S_K2+s}, {32*9216//64}")
        e(f"s_lshl_b32 s{S_RB}, s{S_WV}, 14")
        e(f"s_add_u32 s{S_RB}, s{S_RB}, {RING}")
        e(f"s_add_u32 s{S_U0}, s{S_WV}, s{S_T}")
        e(f"s_add_u32 s{S_U1}, s{S_U0}, 4")
        e(f"s_and_b32 s{S_U0}, s{S_U0}, 7")
        e(f"s_and_b32 s{S_U1}, s{S_U1}, 7")
        e(f"s_mul_i32 s{S_TMP0}, s{S_J}, 1152")
        e(f"s_lshl_b32 s{S_TMP1}, s{S_U0}, 7")
        e(f"s_add_u32 s{S_BASE[('F',1,0)]}, s{S_TMP0}, s{S_TMP1}")
        e(f"s_lshl_b32 s{S_TMP1}, s{S_U1}, 7")
        e(f"s_add_u32 s{S_BASE[('F',1,1)]}, s{S_TMP0}, s{S_TMP1}")
        e(f"s_lshl_b32 s{S_TMP1}, s{S_WN}, 6")
        e(f"s_add_u32 s{S_TMP1}, s{S_TMP1}, 1024")
        e(f"s_add_u32 s{S_BASE[('S',1)]}, s{S_TMP0}, s{S_TMP1}")
        e(f"s_mul_i32 s{S_TMP0}, s{S_J}, 663552")
        e(f"s_lshl_b32 s{S_TMP2}, s{S_U0}, 7")
        e(f"s_add_u32 s{S_BASE[('F',2,0)]}, s{S_TMP0}, s{S_TMP2}")
        e(f"s_lshl_b32 s{S_TMP2}, s{S_U1}, 7")
        e(f"s_add_u32 s{S_BASE[('F',2,1)]}, s{S_TMP0}, s{S_TMP2}")
        e(f"s_add_u32 s{S_BASE[('S',2)]}, s{S_TMP0}, s{S_TMP1}")
        e(f"s_lshl_b32 s{S_PU0}, s{S_U0}, 16")
        e(f"s_lshl_b32 s{S_PU1}, s{S_U1}, 16")
        e(f"s_lshl_b32 s{S_PUS}, s{S_WN}, 15")
        e(f"s_lshl_b32 s{S_TMP0}, s{S_WK}, 14")
        e(f"s_add_u32 s{S_PUS}, s{S_PUS}, s{S_TMP0}")
        e(f"s_add_u32 s{S_PUS}, s{S_PUS}, {8*65536}")
        e(f"v_lshrrev_b32 v54, 3, v{L}")
        e(f"v_and_b32 v55, 7, v{L}")
        e(f"v_lshrrev_b32 v56, 2, v{L}")
        e(f"v_and_b32 v57, 3, v{L}")
        e(f"v_bfe_u32 v60, v{L}, 4, 1")
        e("v_lshlrev_b32 v60, 1, v60")
        e("v_xor_b32 v60, v55, v60")
        e("v_mul_u32_u24 v61, 9216, v54")
        for qq in range(4):
            if qq & 1:
                e("v_xor_b32 v2, 4, v60")
                e(f"v_lshl_add_u32 v{V_DF1+qq}, v2, 4, v61")
            else:
                e(f"v_lshl_add_u32 v{V_DF1+qq}, v60, 4, v61")
            if qq:
                e(f"v_add_u32 v{V_DF1+qq}, {qq*(8*9216-1024)}, v{V_DF1+qq}")

        e(f"v_bfe_u32 v60, v{L}, 5, 1")
        e("v_lshlrev_b32 v60, 1, v60")
        e("v_xor_b32 v60, v57, v60")
        e("v_mul_u32_u24 v61, 9216, v56")
        e(f"v_lshl_add_u32 v{V_DS1}, v60, 4, v61")
        e(f"v_add_u32 v{V_DS1+1}, {16*9216-1024}, v{V_DS1}")
        e(f"v_bfe_u32 v60, v{L}, 4, 2")
        e("v_lshlrev_b32 v60, 1, v60")
        e("v_xor_b32 v60, v55, v60")
        e("v_mul_u32_u24 v61, 1152, v54")
        e(f"v_lshl_add_u32 v{V_DF2}, v60, 4, v61")
        for qq in range(1, 4):
            e(f"v_add_u32 v{V_DF2+qq}, {qq*(8*1152-1024)}, v{V_DF2}")
        e(f"v_bfe_u32 v60, v{L}, 4, 1")
        e("v_lshlrev_b32 v60, 1, v60")
        e("v_xor_b32 v60, v57, v60")
        e("v_mul_u32_u24 v61, 1152, v56")
        e(f"v_lshl_add_u32 v{V_DS2}, v60, 4, v61")
        e(f"v_add_u32 v{V_DS2+1}, {16*1152-1024}, v{V_DS2}")
        e(f"v_and_b32 v2, 15, v{L}")
        e(f"v_lshrrev_b32 v3, 4, v{L}")
        e("v_lshrrev_b32 v52, 2, v2")
        e("v_and_b32 v53, 3, v2")
        e("v_lshrrev_b32 v54, 1, v53")
        e("v_and_b32 v55, 1, v53")
        e("v_lshlrev_b32 v55, 3, v55")
        e(f"v_add_u32 v55, s{S_RB}, v55")
        e("v_and_b32 v56, 1, v3")
        e("v_lshrrev_b32 v57, 1, v52")
        e("v_lshl_add_u32 v58, v3, 3, v52")
        e("v_lshl_or_b32 v59, v56, 1, v57")
        e("v_lshlrev_b32 v59, 1, v59")
        e("v_xor_b32 v59, v54, v59")
        e("v_lshl_add_u32 v59, v59, 4, v55")
        e(f"v_lshl_add_u32 v{V_AF1}, v58, 7, v59")
        for f in range(1, 4):
            e(f"v_xor_b32 v{V_AF1+f}, {f << 5}, v{V_AF1}")
        e("v_lshlrev_b32 v59, 1, v56")
        e("v_xor_b32 v59, v54, v59")
        e("v_lshl_add_u32 v59, v59, 4, v55")
        e(f"v_lshl_add_u32 v{V_AS1}, v58, 6, v59")
        e(f"v_xor_b32 v{V_AS1+1}, 32, v{V_AS1}")
        e("v_lshl_add_u32 v58, v3, 2, v52")
        e("v_bfe_u32 v59, v58, 1, 2")
        e("v_lshlrev_b32 v59, 1, v59")
        e("v_xor_b32 v59, v54, v59")
        e("v_lshl_add_u32 v59, v59, 4, v55")
        e(f"v_lshl_add_u32 v{V_AF2}, v58, 7, v59")
        for f in range(1, 4):
            e(f"v_xor_b32 v{V_AF2+f}, {f << 5}, v{V_AF2}")
        e("v_lshlrev_b32 v59, 1, v56")
        e("v_xor_b32 v59, v54, v59")
        e("v_lshl_add_u32 v59, v59, 4, v55")
        e(f"v_lshl_add_u32 v{V_AS2}, v58, 6, v59")
        e(f"v_xor_b32 v{V_AS2+1}, 32, v{V_AS2}")
        e(f"v_lshlrev_b32 v{V_L16}, 4, v{L}")
        e(f"v_add_u32 v{V_L16H}, 0x10000, v{V_L16}")
        e(f"s_lshl_b32 s{S_TMP0}, s{S_WV}, 12")
        e(f"s_add_u32 s{S_TMP0}, s{S_TMP0}, {TMP}")
        e(f"v_add_u32 v{V_TW}, s{S_TMP0}, v{V_L16}")
        e(f"s_xor_b32 s{S_TMP1}, s{S_WV}, 2")
        e(f"s_lshl_b32 s{S_TMP1}, s{S_TMP1}, 12")
        e(f"s_add_u32 s{S_TMP1}, s{S_TMP1}, {TMP}")
        e(f"v_add_u32 v{V_TR}, s{S_TMP1}, v{V_L16}")
        e(f"s_mul_i32 s{S_TMP0}, s{S_T}, {72*8}")
        e(f"s_add_u32 s{S_TMP0}, s{S_TMP0}, s{S_J}")
        e(f"s_lshl_b32 s{S_TMP0}, s{S_TMP0}, 10")
        e(f"s_add_u32 s{S_TMP0}, s{S_TMP0}, {WS_PART}")
        e(f"v_add_u32 v{V_PART}, s{S_TMP0}, v{V_L16}")


    def k2_convert():
        for s in range(18):
            e(f"s_mul_i32 s{S_K2+s}, s{S_K2+s}, {32*1152//64}")

    xl = []

    def x_load(s):
        return f"buffer_load_dwordx4 {vr(V_XR+4*s,4)}, v51, s[{S_X}:{S_X+3}], s{S_K2+s} offen"
    e(f"s_cmp_eq_u32 s{S_ROLE}, 0")
    e("s_cbranch_scc1 M_NOKGEN")
    srd(e, 56, 68, 1152)
    e(f"s_lshr_b32 s{S_TMP0}, s{S_CH}, 1")
    e(f"s_lshl_b32 s{S_TMP0}, s{S_TMP0}, 2")
    e("v_mov_b32 v2, 0")
    e(f"buffer_load_dword v48, v2, s[56:59], s{S_TMP0} offen")
    e(f"v_lshlrev_b32 v2, 2, v{L}")
    e(f"s_lshl_b32 s{S_TMP0}, s{S_CH}, 8")
    for k in range(4):
        srd(e, 56, 60 + 2 * k, 147456)
        e(f"buffer_load_dword v{44+k}, v2, s[56:59], s{S_TMP0} offen")
    srd(e, S_X, S_P, 2359296)
    if opt.get('klate', False):
        kappa_table()
    if not opt.get('xinject', True):
        for s in range(18):
            e(x_load(s))
    e("v_mov_b32 v42, v51")
    setup()
    e("v_mov_b32 v51, v42")
    e(f"s_mul_i32 s{S_LDS}, s{S_WV}, 28160")
    if dbg == "k":
        stamp(early=True)
    KG.gen_kgen(a, L, S_CH, S_LDS, S_PAR, S_P, in_regs=True, staged=opt.get('staged', True), stamp=(lambda: stamp(early=True)) if dbg == "k" else None,
                inject=[x_load(s).replace("v51", "v42") for s in range(18)] if opt.get('xinject', True) else [])
    k2_convert()
    a.wait(lgkm=0)
    e("s_barrier")
    e("s_mov_b32 s44, 0")
    OOL = opt.get('ool', False)
    if not OOL:
        e("s_branch M_LN")
    ool_start = len(a.lines)
    a.label("M_NOKGEN")
    srd(e, S_X, S_P, 2359296)
    if opt.get('klate', False):
        kappa_table()
    for s in range(18):
        xl.append(a.vmem(x_load(s)))
    if opt.get('pf', True) and PF0 < 8:
        code_prefetch(max(0, PF0 - 1), 8, "B")
    setup()
    k2_convert()
    e("s_mov_b32 s44, 1")
    ool_lines = []
    if OOL:
        e("s_branch M_LN")
        ool_lines = a.lines[ool_start:]
        del a.lines[ool_start:]
    a.label("M_LN")
    stamp(early=True)
    a.c("LayerNorm: row sums through MFMA with an all-ones A operand")
    for i in range(4):
        e(f"v_mov_b32 v{44+i}, 0x3f803f80")
    e("s_nop 1")
    for s in range(18):
        a.wait(vm=a.vm_n(xl[s]))
        cin = "0" if s == 0 else vr(48, 4)
        e(f"v_mfma_f32_16x16x32_bf16 {vr(48,4)}, {vr(44,4)}, {vr(V_XR+4*s,4)}, {cin}")
    stamp(early=True)
    ring_ops = [op for n in range(4) for op in dma_ops(n, None)]
    e("s_nop 7")
    e(f"v_mul_f32 v34, 0x3ae38e39, v48")
    e("v_cvt_pk_bf16_f32 v35, v34, v34")
    e("v_lshlrev_b32 v36, 16, v35")
    e("v_mov_b32 v37, v36")
    e("v_sub_f32 v34, v34, v36")
    e("v_sub_f32 v37, 0, v36")
    e("s_mov_b32 s46, 0x00003f80")
    e("s_mov_b32 s47, 0x3f800000")
    for k in range(72):
        d = V_D + 2 * k
        e(f"v_dot2_f32_bf16 v{d}, v{V_XR+k}, s46, v37")
        e(f"v_dot2_f32_bf16 v{d+1}, v{V_XR+k}, s47, v37")
        if k % 3 == 1 and ring_ops:
            ring_ops.pop(0)()
    assert not ring_ops
    e(f"v_pk_mul_f32 {vr(38,2)}, {vr(V_D,2)}, {vr(V_D,2)}")
    e(f"v_pk_mul_f32 {vr(2,2)}, {vr(V_D+2,2)}, {vr(V_D+2,2)}")
    for k in range(2, 72):
        d = V_D + 2 * k
        r = 38 if k % 2 == 0 else 2
        e(f"v_pk_fma_f32 {vr(r,2)}, {vr(d,2)}, {vr(d,2)}, {vr(r,2)}")
    e(f"v_pk_add_f32 {vr(38,2)}, {vr(38,2)}, {vr(2,2)}")
    e("v_add_f32 v38, v38, v39")
    e("v_mov_b32 v39, v38")
    e("s_nop 1")
    e("v_permlane32_swap_b32 v38, v39")
    e("v_add_f32 v38, v38, v39")
    e("v_mov_b32 v39, v38")
    e("s_nop 1")
    e("v_permlane16_swap_b32 v38, v39")
    e("v_add_f32 v38, v38, v39")
    e("v_mul_f32 v38, 0x3ae38e39, v38")
    e("v_fma_f32 v38, -v34, v34, v38")
    e("v_cvt_pk_bf16_f32 v38, v38, v38")
    e("v_lshlrev_b32 v38, 16, v38")
    e("v_add_f32 v38, 0x3727c5ac, v38")
    e("v_cvt_pk_bf16_f32 v38, v38, v38")
    e("v_lshlrev_b32 v38, 16, v38")
    e("v_sqrt_f32 v38, v38")
    e("s_nop 0")
    e("v_cvt_pk_bf16_f32 v38, v38, v38")
    e("v_lshlrev_b32 v38, 16, v38")
    e("v_rcp_f32 v38, v38")
    e("s_nop 0")
    e("v_mov_b32 v2, v36")
    e("v_mov_b32 v3, v38")
    e("v_mul_f32 v38, 0xbfb8aa3b, v38")
    e("v_mov_b32 v39, v38")
    e("v_and_b32 v41, 63, v40")
    e("v_lshlrev_b32 v41, 3, v41")
    e(f"v_add_u32 v41, {STATS}, v41")
    e(f"ds_write_b64 v41, {vr(2,2)}")
    e("v_mov_b32 v2, 0")
    e(f"v_mov_b32 v3, {S3WORD}")
    e("ds_write_b32 v3, v2")
    e("s_cmp_eq_u32 s44, 0")
    e("s_cbranch_scc1 M_TABFREE")
    e("s_barrier")
    a.label("M_TABFREE")
    e(f"s_lshl_b32 s{S_TMP0}, s{S_WV}, 10")
    e(f"v_add_u32 v41, s{S_TMP0}, v{V_L16}")
    e(f"v_add_u32 v42, 0x10000, v41")
    for s in range(18):
        for k in range(4 * s, 4 * s + 4):
            d = V_D + 2 * k
            e(f"v_pk_mul_f32 {vr(d,2)}, {vr(d,2)}, {vr(38,2)}")
        for k in range(4 * s, 4 * s + 4):
            d = V_D + 2 * k
            e(f"v_cvt_pk_bf16_f32 v{V_D+8*s+(k-4*s)}, v{d}, v{d+1}")
        off = s * 4096
        if off < 65536:
            e(f"ds_write_b128 v41, {vr(V_D+8*s,4)} offset:{off}")
        else:
            e(f"ds_write_b128 v42, {vr(V_D+8*s,4)} offset:{off-65536}")
    e("v_mov_b32 v40, 0")
    e(f"s_lshl_b32 s{S_TMP0}, s{S_T}, 3")
    e(f"s_add_u32 s{S_TMP1}, s{S_TMP0}, s{S_U0}")
    e(f"s_lshl_b32 s{S_TMP1}, s{S_TMP1}, 3")
    e(f"s_add_u32 s{S_TMP1}, s{S_TMP1}, s{S_J}")
    e(f"s_lshl_b32 s{S_TMP1}, s{S_TMP1}, 2")
    e(f"s_add_u32 s{S_F3A}, s{S_TMP1}, {WS_FLAG3}")
    e(f"s_add_u32 s{S_TMP1}, s{S_TMP0}, s{S_U1}")
    e(f"s_lshl_b32 s{S_TMP1}, s{S_TMP1}, 3")
    e(f"s_add_u32 s{S_TMP1}, s{S_TMP1}, s{S_J}")
    e(f"s_lshl_b32 s{S_TMP1}, s{S_TMP1}, 2")
    e(f"s_add_u32 s{S_F3B}, s{S_TMP1}, {WS_FLAG3}")
    e(f"s_lshl_b32 s{S_TMP1}, s{S_T}, 2")
    e(f"s_add_u32 s{S_TMP1}, s{S_TMP1}, s{S_WV}")
    e(f"s_lshl_b32 s{S_TMP1}, s{S_TMP1}, 3")
    e(f"s_add_u32 s{S_TMP1}, s{S_TMP1}, s{S_J}")
    e(f"s_lshl_b32 s{S_TMP1}, s{S_TMP1}, 2")
    e(f"s_add_u32 s{S_F3X}, s{S_TMP1}, {WS_FLAG3X}")
    e("s_mov_b64 exec, 1")
    for sg in (S_F3A, S_F3B, S_F3X):
        a.vmem(f"buffer_store_dword v40, v40, s[{S_WS}:{S_WS+3}], s{sg} offen{SC1}")
    e("s_mov_b64 exec, -1")
    for i in range(4):
        e(f"v_mov_b32 v{44+i}, -1")
    e(f"v_lshrrev_b32 v48, 3, v{L}")
    e(f"v_and_b32 v49, 7, v{L}")
    e(f"s_lshl_b32 s{S_TMP0}, s{S_J}, 6")
    e(f"s_lshl_b32 s{S_TMP1}, s{S_WV}, 4")
    e(f"s_add_u32 s{S_TMP0}, s{S_TMP0}, s{S_TMP1}")
    e(f"v_add_u32 v48, s{S_TMP0}, v48")
    e("v_lshlrev_b32 v48, 12, v48")
    e("v_lshl_add_u32 v48, v49, 4, v48")
    e(f"s_lshl_b32 s{S_TMP2}, s{S_T}, 7")
    e(f"s_add_u32 s{S_TMP2}, s{S_TMP2}, {WS_YT}")
    e(f"s_add_u32 s{S_TMP1}, s{S_TMP2}, {8*4096}")
    a.vmem(f"buffer_store_dwordx4 {vr(44,4)}, v48, s[{S_WS}:{S_WS+3}], s{S_TMP2} offen{SC1}")
    a.vmem(f"buffer_store_dwordx4 {vr(44,4)}, v48, s[{S_WS}:{S_WS+3}], s{S_TMP1} offen{SC1}")
    e(f"s_cmp_lg_u32 s{S_WV}, 3")
    e("s_cbranch_scc1 M_NOCLR")
    e(f"v_lshrrev_b32 v48, 1, v{L}")
    e(f"v_and_b32 v49, 1, v{L}")
    e(f"s_and_b32 s{S_TMP0}, s{S_J}, 1")
    e(f"s_lshl_b32 s{S_TMP0}, s{S_TMP0}, 5")
    e(f"s_add_u32 s{S_TMP0}, s{S_TMP0}, 512")
    e(f"v_add_u32 v48, s{S_TMP0}, v48")
    e("v_lshlrev_b32 v48, 12, v48")
    e("v_lshl_add_u32 v48, v49, 4, v48")
    e(f"s_lshr_b32 s{S_TMP0}, s{S_J}, 1")
    e(f"s_lshl_b32 s{S_TMP0}, s{S_TMP0}, 5")
    e(f"s_add_u32 s{S_TMP0}, s{S_TMP0}, s{S_TMP2}")
    a.vmem(f"buffer_store_dwordx4 {vr(44,4)}, v48, s[{S_WS}:{S_WS+3}], s{S_TMP0} offen{SC1}", counted=False)
    a.label("M_NOCLR")
    if opt.get('aearly', False):
        a.wait(vm=a.vm_n(dma_seq[0]))
        for x in a_reads(0):
            e(x)
    a.wait(lgkm=0)
    e("s_barrier")
    if dbg:
        e(f"v_mov_b32 v{V_STAMP}, v43")
    stamp()

    def bread_str(s, tt):
        idx = 4 * s + tt
        off = idx * 1024
        if off < 65536:
            return f"ds_read_b128 {Breg(s, tt)}, v{V_L16} offset:{off}"
        return f"ds_read_b128 {Breg(s, tt)}, v{V_L16H} offset:{off-65536}"

    a.c("transposed publish of the normalised activations: 16-channel blocks")
    e(f"v_and_b32 v2, 15, v{L}")
    e(f"v_lshrrev_b32 v3, 4, v{L}")
    e("v_lshrrev_b32 v52, 2, v2")
    e("v_and_b32 v53, 3, v2")
    e("v_lshrrev_b32 v54, 1, v3")
    e("v_lshlrev_b32 v54, 10, v54")
    e("v_lshrrev_b32 v55, 1, v53")
    e("v_lshl_add_u32 v54, v55, 8, v54")
    e("v_and_b32 v55, 1, v3")
    e("v_lshl_add_u32 v55, v55, 3, v52")
    e("v_lshl_add_u32 v54, v55, 4, v54")
    e("v_and_b32 v55, 1, v53")
    e("v_lshl_add_u32 v54, v55, 3, v54")
    e("v_lshlrev_b32 v55, 12, v2")
    e("v_lshl_add_u32 v55, v3, 4, v55")
    e(f"s_lshl_b32 s{S_TMP0}, s{S_T}, 7")
    e(f"v_add_u32 v55, s{S_TMP0}, v55")

    def ut_block(dst):
        e(f"s_lshr_b32 s{S_TMP2}, s{S_TMP1}, 1")
        e(f"s_add_u32 s{S_TMP2}, s{S_TMP2}, 18")
        e(f"s_sub_u32 s{S_TMP2}, s{S_TMP2}, s{S_ROT}")
        e(f"s_cmp_ge_u32 s{S_TMP2}, 18")
        e(f"s_cselect_b32 s{S_TMP0}, 18, 0")
        e(f"s_sub_u32 s{S_TMP2}, s{S_TMP2}, s{S_TMP0}")
        e(f"s_lshl_b32 s{S_TMP2}, s{S_TMP2}, 12")
        e(f"s_and_b32 s{S_TMP0}, s{S_TMP1}, 1")
        e(f"s_lshl_b32 s{S_TMP0}, s{S_TMP0}, 9")
        e(f"s_add_u32 s{S_TMP2}, s{S_TMP2}, s{S_TMP0}")
        e(f"v_add_u32 v56, s{S_TMP2}, v54")
        for h2 in range(2):
            for p in range(2):
                e(f"ds_read_b64_tr_b16 {vr(dst+4*h2+2*p,2)}, v56 offset:{h2*2048+p*64}")
        e(f"s_lshl_b32 s{S_TMP2}, s{S_TMP1}, 16")
        a.wait(lgkm=0)

    e(f"s_lshl_b32 s{S_TMP1}, s{S_WV}, 3")
    e(f"s_add_u32 s{S_TMP1}, s{S_TMP1}, s{S_J}")
    ut_block(V_T)
    e(f"s_mov_b32 s{S_UT}, s{S_TMP2}")

    def ut_store(h2):
        def f():
            a.vmem(f"buffer_store_dwordx4 {vr(V_T+4*h2,4)}, v55, s[{S_WS}:{S_WS+3}], s{S_UT} offen offset:{64*h2}{SC1}")
        return f
    e(f"s_cmp_lg_u32 s{S_WV}, 3")
    e("s_cbranch_scc1 M_NOUT2")
    e(f"s_cmp_ge_u32 s{S_J}, 4")
    e("s_cbranch_scc1 M_NOUT2")
    e(f"s_add_u32 s{S_TMP1}, s{S_J}, 32")
    ut_block(V_PK)
    for h2 in range(2):
        a.vmem(f"buffer_store_dwordx4 {vr(V_PK+4*h2,4)}, v55, s[{S_WS}:{S_WS+3}], s{S_TMP2} offen offset:{64*h2}{SC1}", counted=False)
    a.label("M_NOUT2")
    e(f"s_mov_b32 s{S_NL2E}, 0xbfb8aa3b")

    filler_left = [1]

    STEP_GAP = "@gap"
    STEP_BARRIER = "@barrier"
    want_barrier = [False]
    need_lds = [False]
    trailing_ds = [0]

    def emit_step(n, wk, filler, bjit, post, rate=None):
        st = steps[n]
        defer = (n == 44)
        vmn = a.vm_n(dma_seq[n + 1]) if (n + 1 < NS and not defer) else None
        lg = 0 if (want_barrier[0] or need_lds[0] or not opt.get('lgk', True)) else min(15, trailing_ds[0])
        need_lds[0] = False
        trailing_ds[0] = 0
        a.wait(vm=vmn, lgkm=lg)
        if want_barrier[0]:
            e("s_barrier")
            want_barrier[0] = False
        ds_slots = []
        if n + 1 < NS and not defer:
            ds_slots += a_reads(n + 1)
        ds_slots += bjit
        dma = []
        for (mm, q) in plan[n]:
            ops = dma_ops(mm, wk)
            if q == 0:
                dma.append(ops[0])
            dma.append(ops[1 + q])
        if st.kind == 'F':
            b = 0
            mf = [(f, tt) for f in range(4) for tt in range(4)]
            s = st.s
        else:
            b = 1
            mf = [(f, tt) for f in range(2) for tt in range(4)]
            s = 9 * wk + st.s
        first = (st.s == 0)
        nm = len(mf)
        side = [[] for _ in range(nm)]
        per = -(-len(ds_slots) // min(nm, 12 if nm == 16 else nm))
        k = 0
        for x in ds_slots:
            side[k // per].append(x)
            k += 1
        if dma:
            pos = [nm // 2 - 1 + (i * (nm - nm // 2)) // len(dma) for i in range(len(dma))]
            for p, op in zip(pos, dma):
                side[min(p, nm - 1)].append(op)
        nfill = (rate if rate is not None else -(-len(filler) // max(1, filler_left[0]))) if filler else 0
        late = list(post)
        any_ds_post = True
        gap = False
        for m, (f, tt) in enumerate(mf):
            if G1SL and st.g == 1:
                c = acc(st.r, f, tt) if st.kind == 'F' else acc(0, f, tt ^ (2 * wk))
            elif st.kind == 'F' and st.g == 1 and st.r == 1:
                c = acc_g1r1(f, tt)
            else:
                c = acc(b, f, tt if st.kind == 'F' else tt ^ (2 * wk))
            cin = "0" if first else vr(c, 4)
            e(f"v_mfma_f32_16x16x32_bf16 {vr(c,4)}, {vr(Areg(n % 2, f),4)}, {Breg(s, tt)}, {cin}")
            for x in side[m]:
                if callable(x):
                    x()
                else:
                    e(x)
                    if x.startswith("ds_"):
                        trailing_ds[0] = 0
            want = (nfill * (m + 1)) // nm - (nfill * m) // nm
            for _ in range(want):
                if filler and not gap:
                    x = filler[0]
                    if isinstance(x, tuple) and x[0] == "late" and m < 4:
                        break
                    filler.pop(0)
                    if x is STEP_GAP:
                        gap = True
                        need_lds[0] = True
                    elif x is STEP_BARRIER:
                        gap = True
                        want_barrier[0] = True
                    elif isinstance(x, tuple) and x[0] == "late":
                        e(x[1])
                        trailing_ds[0] += 1
                    elif isinstance(x, tuple):
                        late.append(x[1])
                        gap = True
                    elif callable(x):
                        x()
                    else:
                        e(x)
                        if x.startswith("ds_"):
                            trailing_ds[0] += 1
                            if x.startswith("ds_read"):
                                need_lds[0] = True
        for x in late:
            x()
        if late:
            need_lds[0] = need_lds[0] or any_ds_post
        filler_left[0] -= 1

    def run_steps(ns, wk, filler, bjit_fn=None, post=None, rate=None, drain=True):
        filler_left[0] = max(1, len(ns) - 2)
        need_lds[0] = True
        for n in ns:
            if dbg == "s" and (n % 3 == 0) and n < 45 and steps[n].kind == 'F':
                stamp()
            if dbg == "t" and n >= 72 and (n % 2 == 0 or n >= 84):
                stamp()
            if dbg == "u" and 27 <= n < 45:
                stamp()
            emit_step(n, wk, filler, bjit_fn(n) if bjit_fn else [], (post or {}).get(n, []), rate)
        assert not (drain and filler), len(filler)

    def run_plain(F):
        for x in F:
            if callable(x):
                x()
            else:
                e(x)

    def slot_addr(dst, kexpr_setup):
        kexpr_setup()
        e(f"s_add_u32 s{S_TMP0}, s{S_TMP0}, 18")
        e(f"s_sub_u32 s{S_TMP0}, s{S_TMP0}, s{S_ROT}")
        e(f"s_cmp_ge_u32 s{S_TMP0}, 18")
        e(f"s_cselect_b32 s{S_TMP1}, 18, 0")
        e(f"s_sub_u32 s{S_TMP0}, s{S_TMP0}, s{S_TMP1}")
        e(f"s_lshl_b32 s{S_TMP0}, s{S_TMP0}, 12")
        e(f"v_add_u32 v{dst}, s{S_TMP0}, v{V_L16}")

    def set_exh_unit(su):
        slot_addr(V_EXH, lambda: e(f"s_lshl_b32 s{S_TMP0}, s{su}, 1"))
        slot_addr(V_EXH2, lambda: (e(f"s_lshl_b32 s{S_TMP0}, s{su}, 1"), e(f"s_add_u32 s{S_TMP0}, s{S_TMP0}, 1")))

    def unit_epilogue(g, b, su):
        F = []
        k = 0
        for sg in range(2):
            for tt in range(4):
                pk = V_PK + 4 * (k % 2)
                if g == 1:
                    for h in range(2):
                        F += silu_chain([acc(b, 2 * sg + h, tt) + x for x in range(4)], V_T + 4 * h)
                for h in range(2):
                    c = acc(b, 2 * sg + h, tt)
                    F.append(f"v_cvt_pk_bf16_f32 v{pk+2*h}, v{c}, v{c+1}")
                    F.append(f"v_cvt_pk_bf16_f32 v{pk+2*h+1}, v{c+2}, v{c+3}")
                if g == 1:
                    F.append(f"ds_write_b128 v{V_EXH if sg == 0 else V_EXH2}, {vr(pk,4)} offset:{tt*1024}")
                else:
                    def st(sg=sg, tt=tt, pk=pk):
                        e(f"s_add_u32 s{S_TMP0}, s{su}, {(sg*4+tt)*8192}")
                        a.vmem(f"buffer_store_dwordx4 {vr(pk,4)}, v{V_PART}, s[{S_WS}:{S_WS+3}], s{S_TMP0} offen{SC1}")
                    F.append(("post", st))
                k += 1
        return F

    def split_phase(n0, tag, filler, rate, drain):
        e(f"s_cmp_eq_u32 s{S_WK}, 0")
        e(f"s_cbranch_scc0 {tag}_WK1")
        vm_save = a.vm
        seq_save = dict(dma_seq)
        rest = None
        for wk in (0, 1):
            if wk == 0:
                nst_w = nst[0]
            if wk == 1:
                nst[0] = nst_w
                a.label(f"{tag}_WK1")
                a.vm = vm_save
                dma_seq.clear()
                dma_seq.update(seq_save)
            F = list(filler)
            run_steps(list(range(n0, n0 + 9)), wk, F, rate=rate, drain=drain)
            rest = F
            if wk == 0:
                e(f"s_branch {tag}_JOIN")
        a.label(f"{tag}_JOIN")
        return rest

    def split_finish(g):
        b = 1
        F = [("late", f"ds_write_b128 v{V_TW}, {vr(acc(b,f,2+k),4)} offset:{(f*2+k)*1024}") for f in range(2) for k in range(2)]
        F.append(STEP_BARRIER)
        R = V_X0
        for f in range(2):
            for k in range(2):
                F.append(f"ds_read_b128 {vr(R + 4*k, 4)}, v{V_TR} offset:{(f*2+k)*1024}")
            F.append(STEP_GAP)
            for k in range(2):
                for x in range(4):
                    F.append(f"v_add_f32 v{acc(b,f,k)+x}, v{acc(b,f,k)+x}, v{R+4*k+x}")
            F.append(STEP_GAP)
        for k in range(2):
            pk = V_PK + 4 * k
            if g == 1:
                for f in range(2):
                    F += silu_chain([acc(b, f, k) + x for x in range(4)], V_T + 4 * f)
            for f in range(2):
                for h in range(2):
                    F.append(f"v_cvt_pk_bf16_f32 v{pk+2*f+h}, v{acc(b,f,k)+2*h}, v{acc(b,f,k)+2*h+1}")
            if g == 1:
                F.append(f"ds_write_b128 v{V_EXS}, {vr(pk,4)} offset:{k*1024}")
            else:
                def st(k=k, pk=pk):
                    e(f"s_add_u32 s{S_TMP0}, s{S_PUS}, {k*8192}")
                    a.vmem(f"buffer_store_dwordx4 {vr(pk,4)}, v{V_PART}, s[{S_WS}:{S_WS+3}], s{S_TMP0} offen{SC1}")
                F.append(("post", st))
        return F

    HP = V_ACC[1] + 32

    def pack_round0():
        F = []
        for sg in range(2):
            for tt in range(4):
                d = HP + 4 * (sg * 4 + tt)
                for h in range(2):
                    c = acc(0, 2 * sg + h, tt)
                    F.append(f"v_cvt_pk_bf16_f32 v{d+2*h}, v{c}, v{c+1}")
                    F.append(f"v_cvt_pk_bf16_f32 v{d+2*h+1}, v{c+2}, v{c+3}")
        return F

    def silu_items():
        items = []
        for sg in range(2):
            for tt in range(4):
                pk = V_PK + 4 * (tt % 2)
                c0, c1 = acc(0, 2 * sg, tt), acc(0, 2 * sg + 1, tt)
                F = silu_chain([c0 + x for x in range(4)], V_T) + silu_chain([c1 + x for x in range(4)], V_T + 4)
                for h, c in enumerate((c0, c1)):
                    F.append(f"v_cvt_pk_bf16_f32 v{pk+2*h}, v{c}, v{c+1}")
                    F.append(f"v_cvt_pk_bf16_f32 v{pk+2*h+1}, v{c+2}, v{c+3}")
                F.append(f"ds_write_b128 v{V_EXH if sg == 0 else V_EXH2}, {vr(pk,4)} offset:{tt*1024}")
                items.append(F)
        return items

    def silu_exposed():
        C = []
        k = 0
        for sg in range(2):
            for tt in range(4):
                pk = V_PK + 4 * (k % 2)
                t = V_ACC[0] + 32 + 8 * k if k < 4 else V_ACC[1] + 8 * (k - 4)
                src = [acc_g1r1(2 * sg, tt), acc_g1r1(2 * sg + 1, tt)]
                for h in range(2):
                    for x in range(4):
                        C.append(f"v_exp_f32 v{t+4*h+x}, v{src[h]+x}")
                for x in range(0, 8, 2):
                    C.append(f"v_pk_add_f32 {vr(t+x,2)}, {vr(t+x,2)}, 1.0 op_sel_hi:[1,0]")
                for x in range(8):
                    C.append(f"v_rcp_f32 v{t+x}, v{t+x}")
                for h in range(2):
                    for x in (0, 2):
                        C.append(f"v_pk_mul_f32 {vr(t+4*h+x,2)}, {vr(t+4*h+x,2)}, {vr(src[h]+x,2)}")
                for x in range(4):
                    C.append(f"v_cvt_pk_bf16_f32 v{pk+x}, v{t+2*x}, v{t+2*x+1}")
                C.append(f"ds_write_b128 v{V_EXH if sg == 0 else V_EXH2}, {vr(pk,4)} offset:{tt*1024}")
                k += 1
        for x in schedule(C, dist=3, window=40):
            e(x)

    def bjit(n0):
        def f(n):
            i = n - n0
            return [bread_str(i + 1, tt) for tt in range(4)] if i + 1 < 18 else []
        return f

    ut_store(0)()
    ut_store(1)()
    for tt in range(4):
        e(bread_str(0, tt))
    if not opt.get('aearly', False):
        a.wait(vm=a.vm_n(dma_seq[0]))
        for x in a_reads(0):
            e(x)
    stamp()
    a.c("GEMM1 round 0")
    run_steps(list(range(0, 18)), None, [], bjit(0), post={})
    a.wait(lgkm=0)
    e("s_barrier")
    e(f"s_cmp_lg_u32 s{S_WV}, 0")
    e("s_cbranch_scc1 M_NOARR1")
    e(f"s_and_b32 s{S_TMP0}, s2, 3")
    e(f"s_lshl_b32 s{S_TMP0}, s{S_TMP0}, 6")
    e("v_mov_b32 v58, 1")
    e("v_mov_b32 v59, 0")
    e("s_mov_b64 exec, 1")
    a.vmem(f"buffer_atomic_add v58, v59, s[{S_DBG}:{S_DBG+3}], s{S_TMP0} offen{SC1}", counted=False)
    e("s_mov_b64 exec, -1")
    a.label("M_NOARR1")
    stamp()
    set_exh_unit(S_U0)
    slot_addr(V_EXS, lambda: e(f"s_add_u32 s{S_TMP0}, s{S_WN}, 16"))
    e(f"s_lshl_b32 s{S_TMP1}, s{S_WK}, 11")
    e(f"v_add_u32 v{V_EXS}, s{S_TMP1}, v{V_EXS}")
    if G1SL:
        def items_of(b, lo=0, hi=8):
            F = []
            for sg in range(2):
                for tt in range(4):
                    if not (lo <= sg * 4 + tt < hi):
                        continue
                    pk = V_PK + 4 * (tt % 2)
                    c0, c1 = acc(b, 2 * sg, tt), acc(b, 2 * sg + 1, tt)
                    F += silu_chain([c0 + x for x in range(4)], V_T) + silu_chain([c1 + x for x in range(4)], V_T + 4)
                    for h, c in enumerate((c0, c1)):
                        F.append(f"v_cvt_pk_bf16_f32 v{pk+2*h}, v{c}, v{c+1}")
                        F.append(f"v_cvt_pk_bf16_f32 v{pk+2*h+1}, v{c+2}, v{c+3}")
                    F.append(f"ds_write_b128 v{V_EXH if sg == 0 else V_EXH2}, {vr(pk,4)} offset:{tt*1024}")
            return F
        a.c("GEMM1 round 1")
        run_steps(list(range(18, 36)), None, items_of(0))
        stamp()
        set_exh_unit(S_U1)
        a.c("GEMM1 split unit")
        NS_ITEMS = opt.get('nsit', 6)
        split_phase(36, "M_G1S", items_of(1, 0, NS_ITEMS), None, True)
        stamp()
        e("s_nop 7")
        for f in range(2):
            for k in range(2):
                e(f"ds_write_b128 v{V_TW}, {vr(acc(0,f,2+k),4)} offset:{(f*2+k)*1024}")
        C = []
        for it in range(NS_ITEMS, 8):
            sg, tt = it // 4, it % 4
            pk = V_PK + 4 * (it % 2)
            t = V_A + 16 * ((it - NS_ITEMS) % 2) + (0 if True else 0)
            t = (Areg(1, 0) if (it % 2) else Areg(0, 0))
            srcs = [acc(1, 2 * sg, tt), acc(1, 2 * sg + 1, tt)]
            for h in range(2):
                for x in range(4):
                    C.append(f"v_exp_f32 v{t+4*h+x}, v{srcs[h]+x}")
            for x in range(0, 8, 2):
                C.append(f"v_pk_add_f32 {vr(t+x,2)}, {vr(t+x,2)}, 1.0 op_sel_hi:[1,0]")
            for x in range(8):
                C.append(f"v_rcp_f32 v{t+x}, v{t+x}")
            for h in range(2):
                for x in (0, 2):
                    C.append(f"v_pk_mul_f32 {vr(t+4*h+x,2)}, {vr(t+4*h+x,2)}, {vr(srcs[h]+x,2)}")
            for x in range(4):
                C.append(f"v_cvt_pk_bf16_f32 v{pk+x}, v{t+2*x}, v{t+2*x+1}")
            C.append(f"ds_write_b128 v{V_EXH if sg == 0 else V_EXH2}, {vr(pk,4)} offset:{tt*1024}")
        for x in schedule(C, dist=3, window=40):
            e(x)
        a.wait(lgkm=0)
        e("s_barrier")
        Rr = V_ACC[1]
        for k in range(4):
            e(f"ds_read_b128 {vr(Rr + 4*k, 4)}, v{V_TR} offset:{k*1024}")
        a.wait(vm=a.vm_n(dma_seq[45]))
        for x in a_reads(45):
            e(x)
        a.wait(lgkm=8)
        C = []
        T = V_ACC[1] + 16
        for f in range(2):
            for k in range(2):
                for x in (0, 2):
                    C.append(f"v_pk_add_f32 {vr(acc(0,f,k)+x,2)}, {vr(acc(0,f,k)+x,2)}, {vr(Rr+(f*2+k)*4+x,2)}")
        src = [acc(0, f, k) for k in range(2) for f in range(2)]
        for n_, c0 in enumerate(src):
            for x in range(4):
                C.append(f"v_exp_f32 v{T+4*n_+x}, v{c0+x}")
            for x in (0, 2):
                C.append(f"v_pk_add_f32 {vr(T+4*n_+x,2)}, {vr(T+4*n_+x,2)}, 1.0 op_sel_hi:[1,0]")
            for x in range(4):
                C.append(f"v_rcp_f32 v{T+4*n_+x}, v{T+4*n_+x}")
            for x in (0, 2):
                C.append(f"v_pk_mul_f32 {vr(T+4*n_+x,2)}, {vr(T+4*n_+x,2)}, {vr(c0+x,2)}")
        for k in range(2):
            pk = V_PK + 4 * k
            for f in range(2):
                t = T + 4 * (k * 2 + f)
                C.append(f"v_cvt_pk_bf16_f32 v{pk+2*f}, v{t}, v{t+1}")
                C.append(f"v_cvt_pk_bf16_f32 v{pk+2*f+1}, v{t+2}, v{t+3}")
            C.append(f"ds_write_b128 v{V_EXS}, {vr(pk,4)} offset:{k*1024}")
        for x in schedule(C, dist=3, window=40):
            e(x)
        a.wait(lgkm=0)
        e("s_barrier")
    else:
        a.c("GEMM1 split unit")
        items = silu_items()
        split_phase(18, "M_G1S", [x for it in items[:4] for x in it], None, True)
        stamp()
        a.c("GEMM1 round 1")
        sf = split_finish(1)
        bi = sf.index(STEP_BARRIER)
        wr, rest = sf[:bi], sf[bi+1:]
        g1 = rest.index(STEP_GAP)
        rd0, rest = rest[:g1], rest[g1+1:]
        g2 = rest.index(STEP_GAP)
        ad0, rest = rest[:g2], rest[g2+1:]
        g3 = rest.index(STEP_GAP)
        rd1, rest = rest[:g3], rest[g3+1:]
        g4 = rest.index(STEP_GAP)
        ad1, fin1 = rest[:g4], rest[g4+1:]
        h4 = len(items[4]) // 2
        Q = (wr[:2] + items[4][:h4] + [STEP_GAP] + wr[2:] + items[4][h4:] + [STEP_BARRIER] + items[5] + rd0 + items[6][:8] + [STEP_GAP]
             + ad0 + rd1 + items[6][8:] + [STEP_GAP] + ad1 + items[7] + fin1)
        run_steps(list(range(27, 45)), None, Q, rate=opt.get('g1rate', 16))
        stamp()
        set_exh_unit(S_U1)
        e("s_nop 3")
        silu_exposed()
        a.wait(vm=a.vm_n(dma_seq[45]))
        for x in a_reads(45):
            e(x)
        a.wait(lgkm=0)
        e("s_barrier")
    for tt in range(4):
        e(bread_str(0, tt))
    stamp()
    a.c("GEMM2 round 0")
    if DEEP0 < NS:
        e(f"s_lshl_b32 s{S_XB}, s{S_WV}, 13")
        e(f"s_sub_u32 s{S_TMP0}, s{S_XB}, s{S_RB}")
        for f in range(4):
            e(f"v_add_u32 v{V_AFX+f}, s{S_TMP0}, v{V_AF2+f}")

    def poll_issue():
        e(f"v_lshlrev_b32 v61, 6, v{L}")
        e("v_min_u32 v61, 192, v61")
        a.vmem(f"buffer_load_dword v62, v61, s[{S_DBG}:{S_DBG+3}], 0 offen{SC1}")
    run_steps(list(range(45, 63)), None, [], bjit(45), post={50: [poll_issue]})
    stamp()
    a.c("GEMM2 split unit")
    split_phase(63, "M_G2S", pack_round0(), None, True)
    stamp()
    a.c("GEMM2 round 1")
    useq = [None]

    def flag_store(sg):
        def f():
            e("v_mov_b32 v58, 1")
            e("v_mov_b32 v59, 0")
            e("s_mov_b64 exec, 1")
            a.vmem(f"buffer_store_dword v58, v59, s[{S_WS}:{S_WS+3}], s{sg} offen{SC1}")
            e("s_mov_b64 exec, -1")
        return f

    last_store = [None]

    def packed_store(k):
        def f():
            e(f"s_add_u32 s{S_TMP0}, s{S_PU0}, {k*8192}")
            if not opt.get('nostore'):
                last_store[0] = a.vmem(f"buffer_store_dwordx4 {vr(HP+4*k,4)}, v{V_PART}, s[{S_WS}:{S_WS+3}], s{S_TMP0} offen{PSC}")
        return f

    def early_flags():
        if last_store[0] is not None:
            a.wait(vm=a.vm_n(last_store[0]))
        flag_store(S_F3A)()
        flag_store(S_F3X)()

    def u_loads():
        e("v_cmp_gt_u32 vcc, 64, v62")
        e(f"s_mov_b32 s{S_TMP1}, 0")
        e("s_nop 3")
        e("s_cbranch_vccz M_UT_READY")
        a.label("M_SPIN1")
        e(f"buffer_load_dword v62, v61, s[{S_DBG}:{S_DBG+3}], 0 offen{SC1}")
        e("s_waitcnt vmcnt(0)")
        e("v_cmp_gt_u32 vcc, 64, v62")
        e(f"s_add_u32 s{S_TMP1}, s{S_TMP1}, 1")
        e(f"s_cmp_ge_u32 s{S_TMP1}, {SPIN_LIMIT}")
        e("s_cbranch_scc1 M_UT_READY")
        e("s_cbranch_vccz M_UT_READY")
        e("s_sleep 2")
        e("s_branch M_SPIN1")
        a.label("M_UT_READY")
        e(f"s_min_u32 s{S_TMP1}, s{S_CH}, 575")
        e(f"s_lshl_b32 s{S_TMP1}, s{S_TMP1}, 12")
        for kq in range(4):
            useq[0] = a.vmem(f"buffer_load_dwordx4 {vr(176+4*kq,4)}, v{V_L16}, s[{S_WS}:{S_WS+3}], s{S_TMP1} offen offset:{kq*1024}{SC1}")
    S_OUT, S_DSK = 8, 48
    X, D, ST, GP, Y = 192, 204, 216, 232, 244
    VX0, VX1, VD0, VD1 = 10, 11, 12, 13

    def final_operand_loads():
        e(f"v_and_b32 v2, 15, v{L}")
        e(f"v_lshrrev_b32 v3, 4, v{L}")
        e("v_and_b32 v7, 1, v3")
        e("v_lshlrev_b32 v7, 4, v7")
        e("v_lshrrev_b32 v3, 1, v3")
        e("v_lshl_add_u32 v3, v3, 3, v7")
        e(f"s_lshl_b32 s{S_TMP0}, s{S_WV}, 4")
        e(f"v_add_u32 v5, s{S_TMP0}, v2")
        e(f"s_lshr_b32 s{S_TMP1}, s{S_J}, 1")
        e(f"s_lshl_b32 s{S_TMP1}, s{S_TMP1}, 4")
        e(f"v_add_u32 v6, s{S_TMP1}, v2")
        e(f"s_lshl_b32 s{S_TMP2}, s{S_T}, 6")
        e(f"v_add_u32 v{VX0}, s{S_TMP2}, v5")
        e(f"v_mul_u32_u24 v{VX0}, 1152, v{VX0}")
        e(f"s_lshl_b32 s{S_TMP0}, s{S_J}, 6")
        e(f"v_add_u32 v{VD0}, s{S_TMP0}, v3")
        e(f"v_lshlrev_b32 v{VD0}, 1, v{VD0}")
        e(f"v_add_u32 v{VX0}, v{VD0}, v{VX0}")
        e(f"v_add_u32 v{VX1}, s{S_TMP2}, v6")
        e(f"v_mul_u32_u24 v{VX1}, 1152, v{VX1}")
        e(f"s_and_b32 s{S_TMP0}, s{S_J}, 1")
        e(f"s_lshl_b32 s{S_TMP0}, s{S_TMP0}, 5")
        e(f"s_add_u32 s{S_TMP0}, s{S_TMP0}, 512")
        e(f"v_add_u32 v{VD1}, s{S_TMP0}, v3")
        e(f"v_lshlrev_b32 v{VD1}, 1, v{VD1}")
        e(f"v_add_u32 v{VX1}, v{VD1}, v{VX1}")
        for pc, (vx, vd, off) in enumerate(((VX0, VD0, 0), (VX0, VD0, 64), (VX1, VD1, 0))):
            e(f"buffer_load_dwordx4 {vr(X+4*pc,4)}, v{vx}, s[{S_X}:{S_X+3}], 0 offen offset:{off}")
            e(f"buffer_load_dwordx4 {vr(D+4*pc,4)}, v{vd}, s[{S_DSK}:{S_DSK+3}], 0 offen offset:{off}")
        e("v_lshlrev_b32 v5, 3, v5")
        e("v_lshlrev_b32 v6, 3, v6")
        e(f"v_add_u32 v5, {STATS}, v5")
        e(f"v_add_u32 v6, {STATS}, v6")
        e(f"ds_read_b64 {vr(ST,2)}, v5")
        e(f"ds_read_b64 {vr(ST+2,2)}, v6")

    def tail_descriptors():
        srd(e, S_OUT, 98, 2359296)
    if opt.get('burst'):
        post = {72: [packed_store(k) for k in range(4)], 73: [packed_store(k) for k in range(4, 8)]}
    else:
        at = opt.get('stat', [72, 74, 76, 78, 80, 82, 84, 86])
        post = {}
        for k in range(8):
            post.setdefault(at[k], []).append(packed_store(k))
    post.setdefault(opt.get('flat', 89), []).append(early_flags)
    post.setdefault(74, []).append(tail_descriptors)
    post.setdefault(87, []).append(u_loads)

    e(f"s_mul_i32 s{S_LDS}, s{S_WV}, {CV.KR_BYTES}")
    e(f"s_mul_i32 s{S_UB}, s{S_WV}, {CV.U_BYTES}")
    e(f"s_add_u32 s{S_UB}, s{S_UB}, 45056")
    F2 = split_finish(2)
    run_steps(list(range(72, 81)), None, F2, post=post, rate=10)
    FX = [STEP_GAP if x == CV.GAP else x for x in CV.expansion(L, S_LDS, S_UB, S_PAR, 60, 4, 10, 160, 172, 34)]
    if opt.get('noexp'):
        FX = []
    run_steps(list(range(81, 88)), None, FX, post=post, rate=26)
    run_steps(list(range(88, 90)), None, [], post=post)
    stamp()
    e("s_nop 7")
    if not opt.get('skipr1'):
        run_plain([x[1] if isinstance(x, tuple) else x for x in unit_epilogue(2, 0, S_PU1)])
    stamp()

    if dbg:
        e(f"v_mov_b32 v222, v{V_STAMP}")
        stamp_reg[0] = 222

    S_Y0, S_Y1, S_YX = 76, 77, 78
    YR = 164
    ylab = [0]

    def y_loads(first):
        if first:
            e(f"v_lshrrev_b32 v2, 1, v{L}")
            e(f"v_and_b32 v3, 1, v{L}")
            e(f"s_lshl_b32 s{S_TMP0}, s{S_J}, 6")
            e(f"v_add_u32 v6, s{S_TMP0}, v2")
            e("v_lshlrev_b32 v6, 12, v6")
            e("v_lshl_add_u32 v6, v3, 4, v6")
            e(f"s_and_b32 s{S_TMP0}, s{S_J}, 1")
            e(f"s_lshl_b32 s{S_TMP0}, s{S_TMP0}, 5")
            e(f"s_add_u32 s{S_TMP0}, s{S_TMP0}, 512")
            e(f"v_add_u32 v7, s{S_TMP0}, v2")
            e("v_lshlrev_b32 v7, 12, v7")
            e("v_lshl_add_u32 v7, v3, 4, v7")
            e(f"s_lshl_b32 s{S_TMP2}, s{S_T}, 7")
            e(f"s_add_u32 s{S_TMP2}, s{S_TMP2}, {WS_YT}")
            e(f"s_lshl_b32 s{S_TMP0}, s{S_WV}, 5")
            e(f"s_add_u32 s{S_Y0}, s{S_TMP2}, s{S_TMP0}")
            e(f"s_add_u32 s{S_Y1}, s{S_Y0}, {32*4096}")
            e(f"s_lshr_b32 s{S_TMP0}, s{S_J}, 1")
            e(f"s_lshl_b32 s{S_TMP0}, s{S_TMP0}, 5")
            e(f"s_add_u32 s{S_YX}, s{S_TMP2}, s{S_TMP0}")
            for k in range(4):
                e(f"v_mov_b32 v{YR+8+k}, 0")
        if first == "setup":
            return
        e(f"buffer_load_dwordx4 {vr(YR,4)}, v6, s[{S_WS}:{S_WS+3}], s{S_Y0} offen{SC1}")
        e(f"buffer_load_dwordx4 {vr(YR+4,4)}, v6, s[{S_WS}:{S_WS+3}], s{S_Y1} offen{SC1}")
        ylab[0] += 1
        e(f"s_cmp_lg_u32 s{S_WV}, 3")
        e(f"s_cbranch_scc1 M_YL{ylab[0]}")
        e(f"buffer_load_dwordx4 {vr(YR+8,4)}, v7, s[{S_WS}:{S_WS+3}], s{S_YX} offen{SC1}")
        a.label(f"M_YL{ylab[0]}")

    e(f"s_cmp_eq_u32 s{S_ROLE}, 0")
    e("s_cbranch_scc1 M_REDUCE")
    S_PB, S_PC, S_EARLY = 72, 74, 75
    V_PL = 9
    def preg(i, jj):
        return ar(128 + 4 * (8 * i + jj), 4)

    def issue_piece(i):
        if i < 2:
            e(f"s_lshl_b32 s{S_PC}, s{S_J}, 3")
            e(f"s_add_u32 s{S_PC}, s{S_PC}, s{S_WV}")
            if i:
                e(f"s_add_u32 s{S_PC}, s{S_PC}, 4")
        else:
            e(f"s_and_b32 s{S_TMP0}, s{S_J}, 1")
            e(f"s_lshl_b32 s{S_TMP0}, s{S_TMP0}, 2")
            e(f"s_lshr_b32 s{S_TMP1}, s{S_J}, 1")
            e(f"s_add_u32 s{S_PC}, s{S_TMP0}, s{S_TMP1}")
            e(f"s_add_u32 s{S_PC}, s{S_PC}, 64")
        e(f"s_lshl_b32 s{S_PC}, s{S_PC}, 13")
        e(f"s_add_u32 s{S_PC}, s{S_PC}, s{S_PB}")
        e(f"s_add_u32 s{S_TMP1}, s{S_PC}, 4096")
        for jj in range(8):
            so = S_PC if jj < 4 else S_TMP1
            e(f"buffer_load_dwordx4 {preg(i, jj)}, v{V_PL}, s[{S_WS}:{S_WS+3}], s{so} offen offset:{(jj % 4)*1024}{SC1}")

    def piece_base():
        e(f"v_lshlrev_b32 v{V_PL}, 4, v{L}")
        e(f"s_mul_i32 s{S_PB}, s{S_T}, {72*8192}")
        e(f"s_add_u32 s{S_PB}, s{S_PB}, {WS_PART}")

    R = CV.Regs()


    def publish_partials():
        e("s_waitcnt vmcnt(0)")
        flag_store(S_F3B)()
    def early_pieces():
        e(f"v_mov_b32 v3, {S3WORD}")
        e("ds_read_b32 v2, v3")
        e(f"s_mov_b32 s{S_EARLY}, 0")
        e("s_waitcnt lgkmcnt(0)")
        e("v_cmp_ne_u32 vcc, 1, v2")
        piece_base()
        e("s_nop 1")
        e("s_cbranch_vccnz M_NOT_EARLY")
        e(f"s_mov_b32 s{S_EARLY}, 1")
        issue_piece(0)
        issue_piece(1)
        a.label("M_NOT_EARLY")
    nst_save = nst[0]
    e(f"s_mov_b32 s{S_EARLY}, 0")
    hk = {("hook", opt.get('pubat', 16)): publish_partials, ("hook", opt.get('opat', 24)): final_operand_loads, "stamp": stamp}
    if opt.get('early', False):
        hk[("hook", opt.get('earlyat', 40))] = early_pieces
    CV.gen_conv(a, R, S_CH, S_LDS, S_UB, S_WS, 80, useq[0], publish_sc=SC1, hooks=hk, progressive=opt.get('prog', True), PRE=opt.get('pre', 3))
    nst_conv = nst[0]
    if opt.get('early', False):
        e(f"s_waitcnt vmcnt({19 if opt.get('prog', True) else 20})")
        e(f"s_cmp_eq_u32 s{S_EARLY}, 1")
        e("s_cbranch_scc1 M_TWO")
    e(f"s_waitcnt vmcnt({3 if opt.get('prog', True) else 4})")
    e("s_branch M_WAIT_WORD")

    a.label("M_REDUCE")
    nst[0] = nst_save
    e(f"s_mov_b32 s{S_EARLY}, 0")
    e("s_waitcnt vmcnt(0) lgkmcnt(0)")
    flag_store(S_F3B)()
    final_operand_loads()
    e("s_waitcnt vmcnt(0)")
    e(f"s_cmp_lg_u32 s{S_WV}, 3")
    e("s_cbranch_scc1 M_WAIT_WORD")
    e(f"s_lshl_b32 s{S_TMP0}, s{S_T}, 3")
    e(f"s_add_u32 s{S_TMP0}, s{S_TMP0}, s{S_J}")
    e(f"s_lshl_b32 s{S_TMP0}, s{S_TMP0}, 5")
    e(f"s_add_u32 s{S_TMP0}, s{S_TMP0}, {WS_FLAG3}")
    e(f"s_and_b32 s{S_TMP1}, s{S_J}, 1")
    e(f"s_lshr_b32 s{S_TMP2}, s{S_J}, 2")
    e(f"s_lshl_b32 s{S_TMP2}, s{S_TMP2}, 1")
    e(f"s_add_u32 s{S_TMP1}, s{S_TMP1}, s{S_TMP2}")
    e(f"s_lshl_b32 s{S_TMP2}, s{S_T}, 2")
    e(f"s_add_u32 s{S_TMP1}, s{S_TMP1}, s{S_TMP2}")
    e(f"s_lshl_b32 s{S_TMP1}, s{S_TMP1}, 5")
    e(f"s_add_u32 s{S_TMP1}, s{S_TMP1}, {WS_FLAG3X}")
    e(f"v_and_b32 v2, 7, v{L}")
    e("v_lshlrev_b32 v2, 2, v2")
    e(f"v_mov_b32 v3, s{S_TMP0}")
    e(f"v_mov_b32 v4, s{S_TMP1}")
    e(f"v_cmp_gt_u32 vcc, 32, v{L}")
    e("s_nop 1")
    e("v_cndmask_b32 v3, v4, v3, vcc")
    e("v_add_u32 v2, v2, v3")
    e(f"s_mov_b32 s{S_TMP0}, 0")
    a.label("M_SPIN3")
    e(f"buffer_load_dword v3, v2, s[{S_WS}:{S_WS+3}], 0 offen{SC1}")
    e("s_waitcnt vmcnt(0)")
    e("v_cmp_ne_u32 vcc, 1, v3")
    e(f"s_add_u32 s{S_TMP0}, s{S_TMP0}, 1")
    e(f"s_cmp_ge_u32 s{S_TMP0}, {SPIN_LIMIT}")
    e("s_cbranch_scc1 M_SPIN3_DONE")
    e("s_cbranch_vccz M_SPIN3_DONE")
    e(f"s_sleep {opt.get('sl3', 3)}")
    e("s_branch M_SPIN3")
    a.label("M_SPIN3_DONE")
    e("v_mov_b32 v2, 1")
    e(f"v_mov_b32 v3, {S3WORD}")
    e("ds_write_b32 v3, v2")
    e("s_branch M_S3_OK")
    a.label("M_WAIT_WORD")
    e(f"v_mov_b32 v3, {S3WORD}")
    e(f"s_mov_b32 s{S_TMP0}, 0")
    a.label("M_SPIN3W")
    e("ds_read_b32 v2, v3")
    e("s_waitcnt lgkmcnt(0)")
    e("v_cmp_ne_u32 vcc, 1, v2")
    e(f"s_add_u32 s{S_TMP0}, s{S_TMP0}, 1")
    e(f"s_cmp_ge_u32 s{S_TMP0}, {SPIN_LIMIT*8}")
    e("s_cbranch_scc1 M_S3_OK")
    e("s_cbranch_vccz M_S3_OK")
    e("s_sleep 1")
    e("s_branch M_SPIN3W")
    a.label("M_S3_OK")
    nst[0] = max(nst_conv, nst_save)
    stamp()
    piece_base()
    issue_piece(0)
    issue_piece(1)
    e(f"s_cmp_lg_u32 s{S_WV}, 3")
    e("s_cbranch_scc1 M_TWO")
    issue_piece(2)
    a.label("M_TWO")
    SA, SB = 88, 92
    e(f"v_and_b32 v2, 15, v{L}")
    e(f"v_lshrrev_b32 v3, 4, v{L}")
    e("v_lshrrev_b32 v4, 2, v2")
    e("v_cmp_eq_u32 vcc, v3, v4")
    e("v_and_b32 v5, 1, v2")
    e("v_lshlrev_b32 v5, 4, v5")
    e("v_mov_b32 v6, 0x3f80")
    e("v_lshlrev_b32 v5, v5, v6")
    e("v_cndmask_b32 v5, 0, v5, vcc")
    e("v_and_b32 v6, 2, v2")
    e("v_cmp_eq_u32 vcc, 0, v6")
    e(f"v_mov_b32 v{SA+2}, 0")
    e(f"v_mov_b32 v{SA+3}, 0")
    e(f"v_cndmask_b32 v{SA}, 0, v5, vcc")
    e(f"v_cndmask_b32 v{SA+1}, v5, 0, vcc")
    e(f"v_mov_b32 v{SB}, 0")
    e(f"v_mov_b32 v{SB+1}, 0")
    e(f"v_mov_b32 v{SB+2}, v{SA}")
    e(f"v_mov_b32 v{SB+3}, v{SA+1}")
    y_loads("setup")
    e(f"v_lshlrev_b32 v14, 4, v{L}")
    e(f"s_lshl_b32 s{S_TMP0}, s{S_WV}, 11")
    e(f"s_add_u32 s{S_TMP0}, s{S_TMP0}, {YBUF}")
    e(f"v_add_u32 v15, {YBUF+8192}, v14")
    e(f"v_add_u32 v14, s{S_TMP0}, v14")
    e(f"v_and_b32 v2, 15, v{L}")
    e(f"v_lshrrev_b32 v3, 4, v{L}")
    e("v_lshrrev_b32 v4, 2, v2")
    e("v_and_b32 v5, 3, v2")
    e("v_lshl_add_u32 v4, v3, 2, v4")
    e("v_lshlrev_b32 v4, 5, v4")
    e("v_lshl_add_u32 v4, v5, 3, v4")
    e(f"v_add_u32 v5, {YBUF+8192}, v4")
    e(f"v_add_u32 v4, s{S_TMP0}, v4")

    def sums(i):
        O = 112 + 16 * i
        out = []
        for jj in range(8):
            cin = lambda r: "0" if jj == 0 else vr(r, 4)
            out.append(f"v_mfma_f32_16x16x32_bf16 {vr(O,4)}, {vr(SA,4)}, {preg(i, jj)}, {cin(O)}")
            out.append(f"v_mfma_f32_16x16x32_bf16 {vr(O+4,4)}, {vr(SB,4)}, {preg(i, jj)}, {cin(O+4)}")
        return out

    def activation(i):
        O, G, T = 112 + 16 * i, 120 + 16 * i, 176 + 4 * i
        C = []
        c = C.append
        for k in range(8):
            c(f"v_mul_f32 v{O+k}, 0xbf317218, v{O+k}")
        for k in range(4):
            round_pair(c, O + 2 * k, O + 2 * k + 1, T + k)
        for k in range(8):
            c(f"v_mul_f32 v{G+k}, s{S_NL2E}, v{O+k}")
        for k in range(8):
            c(f"v_exp_f32 v{G+k}, v{G+k}")
        for k in range(8):
            c(f"v_add_f32 v{G+k}, 1.0, v{G+k}")
        for k in range(8):
            c(f"v_rcp_f32 v{G+k}, v{G+k}")
        for k in range(8):
            c(f"v_mul_f32 v{G+k}, v{G+k}, v{O+k}")
        for k in range(4):
            c(f"v_cvt_pk_bf16_f32 v{GP+4*i+k}, v{G+2*k}, v{G+2*k+1}")
        return C
    PB = 16

    def pre_piece(pc, st):
        XF, S_, G_ = PB + 24 * pc, PB + 24 * pc + 8, PB + 24 * pc + 16
        O_, t0 = 96, 104
        C = []
        c = C.append
        for k in range(4):
            unpack2(c, XF + 2 * k, XF + 2 * k + 1, X + 4 * pc + k)
        for k in range(8):
            c(f"v_sub_f32 v{S_+k}, v{XF+k}, v{st}")
        for k in range(8):
            c(f"v_mul_f32 v{S_+k}, v{S_+k}, v{st+1}")
        for k in range(4):
            round_pair(c, S_ + 2 * k, S_ + 2 * k + 1, t0 + k)
        for k in range(4):
            unpack2(c, O_ + 2 * k, O_ + 2 * k + 1, D + 4 * pc + k)
        for k in range(0, 8, 2):
            c(f"v_pk_mul_f32 {vr(S_+k,2)}, {vr(S_+k,2)}, {vr(O_+k,2)}")
        return C

    def pre_g(pc):
        G_ = PB + 24 * pc + 16
        C = []
        for k in range(4):
            unpack2(C.append, G_ + 2 * k, G_ + 2 * k + 1, GP + 4 * pc + k)
        return C
    for x in schedule(pre_piece(0, ST) + pre_piece(1, ST), dist=2, window=24):
        e(x)
    e(f"s_cmp_lg_u32 s{S_WV}, 3")
    e("s_cbranch_scc1 M_PRE2")
    for x in schedule(pre_piece(2, ST + 2), dist=2, window=24):
        e(x)
    a.label("M_PRE2")
    e(f"s_cmp_eq_u32 s{S_EARLY}, 1")
    e("s_cbranch_scc1 M_PW4")
    e("s_waitcnt vmcnt(0)")
    e("s_branch M_PW")
    a.label("M_PW4")
    e(f"s_waitcnt vmcnt({1 if opt.get('prog', True) else 4})")
    a.label("M_PW")
    stamp()
    def interleave(mf, act):
        mf, act = list(mf), list(act)
        while act or mf:
            if mf:
                e(mf.pop(0))
            for _ in range(4):
                if act:
                    e(act.pop(0))
    for x in sums(0):
        e(x)
    e("s_nop 7")
    interleave(sums(1), schedule(activation(0), dist=2, window=24))
    e(f"s_cmp_lg_u32 s{S_WV}, 3")
    e("s_cbranch_scc1 M_SUM2")
    e("s_nop 7")
    interleave(sums(2), schedule(activation(1), dist=2, window=24))
    y_loads(False)
    e("s_nop 3")
    for x in schedule(activation(2), dist=2, window=24):
        e(x)
    e("s_branch M_ACT2")
    a.label("M_SUM2")
    y_loads(False)
    e("s_nop 3")
    for x in schedule(activation(1), dist=2, window=24):
        e(x)
    a.label("M_ACT2")
    e("s_nop 1")
    for pc in range(3):
        e(f"v_permlane16_swap_b32 v{GP+4*pc}, v{GP+4*pc+2}")
        e(f"v_permlane16_swap_b32 v{GP+4*pc+1}, v{GP+4*pc+3}")
    for x in schedule(pre_g(0) + pre_g(1) + pre_g(2), dist=2, window=24):
        e(x)
    stamp()
    a.label("M_Y_POLL")
    e(f"s_mov_b32 s{S_TMP0}, 0")
    a.label("M_Y_CHECK")
    e("s_waitcnt vmcnt(0)")
    e(f"v_max3_u32 v2, v{YR}, v{YR+1}, v{YR+2}")
    e(f"v_max3_u32 v3, v{YR+3}, v{YR+4}, v{YR+5}")
    e(f"v_max3_u32 v2, v2, v{YR+6}, v{YR+7}")
    e(f"v_max3_u32 v3, v3, v{YR+8}, v{YR+9}")
    e(f"v_max3_u32 v2, v2, v{YR+10}, v{YR+11}")
    e("v_max_u32 v2, v2, v3")
    e("v_cmp_eq_u32 vcc, -1, v2")
    e(f"s_add_u32 s{S_TMP0}, s{S_TMP0}, 1")
    e(f"s_cmp_ge_u32 s{S_TMP0}, {SPIN_LIMIT}")
    e("s_cbranch_scc1 M_Y_OK")
    e("s_cbranch_vccz M_Y_OK")
    e(f"s_sleep {opt.get('sly', 2)}")
    y_loads(False)
    e("s_branch M_Y_CHECK")
    a.label("M_Y_OK")
    stamp()
    e(f"ds_write_b128 v14, {vr(YR,4)}")
    e(f"ds_write_b128 v14, {vr(YR+4,4)} offset:1024")
    e(f"s_cmp_lg_u32 s{S_WV}, 3")
    e("s_cbranch_scc1 M_Y_NOX2")
    e(f"ds_write_b128 v15, {vr(YR+8,4)}")
    a.label("M_Y_NOX2")
    e("s_waitcnt lgkmcnt(0)")
    for sg in range(2):
        for h in range(2):
            e(f"ds_read_b64_tr_b16 {vr(Y+4*sg+2*h,2)}, v4 offset:{(32*sg+16*h)*32}")
    for h in range(2):
        e(f"ds_read_b64_tr_b16 {vr(Y+8+2*h,2)}, v5 offset:{16*h*32}")
    e("s_waitcnt lgkmcnt(0)")
    for pc in range(3):
        e(f"v_permlane16_swap_b32 v{Y+4*pc}, v{Y+4*pc+2}")
        e(f"v_permlane16_swap_b32 v{Y+4*pc+1}, v{Y+4*pc+3}")

    def final_piece(pc, vx, off):
        XF, S_, G_ = PB + 24 * pc, PB + 24 * pc + 8, PB + 24 * pc + 16
        Y_ = 96 + 8 * (pc % 2)
        o = 124 + 4 * (pc % 2)
        C = []
        c = C.append
        for k in range(4):
            unpack2(c, Y_ + 2 * k, Y_ + 2 * k + 1, Y + 4 * pc + k)
        for k in range(0, 8, 2):
            c(f"v_pk_add_f32 {vr(S_+k,2)}, {vr(S_+k,2)}, {vr(Y_+k,2)}")
        for k in range(0, 8, 2):
            c(f"v_pk_fma_f32 {vr(S_+k,2)}, {vr(S_+k,2)}, {vr(G_+k,2)}, {vr(XF+k,2)}")
        for k in range(4):
            c(f"v_cvt_pk_bf16_f32 v{o+k}, v{S_+2*k}, v{S_+2*k+1}")
        for x in schedule(C, dist=2, window=24):
            e(x)
        e(f"buffer_store_dwordx4 {vr(o,4)}, v{vx}, s[{S_OUT}:{S_OUT+3}], 0 offen offset:{off}{opt.get('osc', SC1)}")
    final_piece(0, VX0, 0)
    final_piece(1, VX0, 64)
    e(f"s_cmp_lg_u32 s{S_WV}, 3")
    e("s_cbranch_scc1 M_NOX")
    final_piece(2, VX1, 0)
    a.label("M_NOX")
    if dbg:
        e("s_waitcnt vmcnt(0)")
        stamp(final=True)
        sr_ = stamp_reg[0]
        e(f"s_lshl_b32 s44, s2, 2")
        e(f"s_add_u32 s44, s44, s{S_WV}")
        e(f"s_lshl_b32 s44, s44, 7")
        e(f"s_add_u32 s44, s44, {WS_STAMP}")
        e(f"v_lshlrev_b32 v3, 2, v{L}")
        e(f"v_cmp_gt_u32 vcc, 32, v{L}")
        e("s_nop 4")
        e("s_and_saveexec_b64 s[46:47], vcc")
        e(f"buffer_store_dword v{sr_}, v3, s[{S_WS}:{S_WS+3}], s44 offen")
        if dbg == "h":
            e(f"s_cmp_lg_u32 s2, {DBG_WG}")
            e("s_cbranch_scc1 M_END")
            e(f"s_cmp_lg_u32 s{S_WV}, 0")
            e("s_cbranch_scc1 M_END")
            e("s_mov_b64 exec, -1")
            e(f"v_readlane_b32 s44, v{sr_}, 0")
            e("s_nop 3")
            e(f"v_subrev_u32 v2, s44, v{sr_}")
            e(f"v_mov_b32 v4, 0")
            sel = [1, 2, 4, 5, 6, 7, 8, 9, 10, 12, 13, 14, 15, 16, 17]
            for i, k in enumerate(sel):
                e(f"v_readlane_b32 s45, v2, {k}")
                e("s_nop 3")
                e(f"v_writelane_b32 v4, s45, {i+1}")
            e(f"v_lshlrev_b32 v3, 2, v{L}")
            e(f"v_cmp_gt_u32 vcc, 16, v{L}")
            e(f"v_cmp_lt_u32 s[46:47], 0, v{L}")
            e("s_nop 4")
            e("s_and_b64 vcc, vcc, s[46:47]")
            e("s_and_saveexec_b64 s[46:47], vcc")
            e(f"buffer_store_dword v4, v3, s[{S_DBG}:{S_DBG+3}], 0 offen")
    if opt.get('enddelay'):
        e("s_waitcnt vmcnt(0)")
        e("s_memrealtime s[96:97]")
        e("s_waitcnt lgkmcnt(0)")
        e(f"s_add_u32 s44, s96, {opt['enddelay']}")
        a.label("M_DELAY")
        e("s_memrealtime s[96:97]")
        e("s_waitcnt lgkmcnt(0)")
        e("s_cmp_lt_u32 s96, s44")
        e("s_cbranch_scc1 M_DELAY")
    if ool_lines:
        e("s_endpgm")
        a.lines += ool_lines
    a.label("M_END")
    e("s_endpgm")
    text = a.text()
    return kernel_head(name) + text + "\n" + kernel_desc(name, 512, 256)
```
